```python
import torch

def _softmax(x, axis=-1):
    return torch.softmax(x, dim=axis)

def _gelu(x):
    return torch.nn.functional.gelu(x, approximate='tanh')

def _silu(x):
    return torch.nn.functional.silu(x)

def _sigmoid(x):
    return torch.sigmoid(x)

def _layernorm(x, axis=-1, eps=1e-05):
    m = x.mean(dim=axis, keepdim=True)
    v = x.var(dim=axis, keepdim=True, unbiased=False)
    return (x - m) / torch.sqrt(v + eps)

def _scatter_add(tgt, idx, src, axis=0):
    return tgt.clone().index_add_(axis, idx, src)

def _segment_sum(src, seg, n):
    out = torch.zeros((n,) + src.shape[1:], dtype=src.dtype)
    return out.index_add_(0, seg, src)

def _pad(x, pw):
    flat = tuple((v for pair in reversed(pw) for v in pair))
    return torch.nn.functional.pad(x, flat)
kernel_name = 'standalone__factorization_afm__recsys'

def setup_inputs():

    _w = lambda a: (lambda t: t.to(torch.bfloat16) if t.is_floating_point() else t)(torch.as_tensor(a))
    B, F, D, V = (1024, 26, 128, min(1000000, 100000))
    A = D
    ii, jj = tuple(torch.triu_indices(F, F, 1).unbind(0))
    return {'idx': _w((lambda lo, hi, *s: torch.randint(lo, hi, s))(0, V, B, F).to(torch.int64)), 'table': _w((lambda *s: torch.randn(*s, dtype=torch.bfloat16) * 0.8)(V, D)), 'ii': _w(ii.to(torch.int64)), 'jj': _w(jj.to(torch.int64)), 'W': _w((lambda *s: torch.randn(*s, dtype=torch.bfloat16) * 0.4)(D, A) * (1.0 / D ** 0.5)), 'b': _w((lambda *s: torch.randn(*s, dtype=torch.bfloat16) * 0.4)(A)), 'h': _w((lambda *s: torch.randn(*s, dtype=torch.bfloat16) * 0.4)(A)), 'p': _w((lambda *s: torch.randn(*s, dtype=torch.bfloat16) * 0.8)(D))}

def reference(idx, table, ii, jj, W, b, h, p):
    emb = table[idx]
    ei = emb[:, ii, :].clone()
    ej = emb[:, jj, :].clone()
    pair = ei * ej
    hid = pair @ W + b
    hid = 0.5 * (hid + torch.abs(hid))
    e = hid @ h
    alpha = _softmax(e, axis=-1)
    pooled = torch.einsum('bp,bpd->bd', alpha, pair)
    return pooled @ p
```

```python
import re

def vr(a, n=1): return f'v{a}' if n == 1 else f'v[{a}:{a+n-1}]'
def ar(a, n=1): return f'a{a}' if n == 1 else f'a[{a}:{a+n-1}]'
def sr(a, n=1): return f's{a}' if n == 1 else f's[{a}:{a+n-1}]'

_REG = re.compile(r'^-?\|?([vas])(\d+)\|?$')
_RNG = re.compile(r'^-?\|?([vas])\[(\d+):(\d+)\]\|?$')

def regs_of(tok):
    tok = tok.strip()
    m = _REG.match(tok)
    if m: return [(m.group(1), int(m.group(2)))]
    m = _RNG.match(tok)
    if m: return [(m.group(1), i) for i in range(int(m.group(2)), int(m.group(3)) + 1)]
    if tok == 'vcc': return [('s', 'vcc')]
    if tok == 'exec': return [('s', 'exec')]
    if tok == 'm0': return [('s', 'm0')]
    return []

TRANS = ('v_exp_f32', 'v_log_f32', 'v_rcp_f32', 'v_rsq_f32', 'v_sqrt_f32', 'v_sin_f32', 'v_cos_f32')

class Ins:
    def __init__(self, text):
        self.text = text
        t = text.split(';')[0].strip()
        self.label = t.endswith(':')
        parts = t.split(None, 1)
        self.mn = parts[0] if parts else ''
        rest = parts[1] if len(parts) > 1 else ''
        ops = []; cur = ''; depth = 0
        for ch in rest:
            if ch == '[': depth += 1
            if ch == ']': depth -= 1
            if ch == ',' and depth == 0:
                ops.append(cur); cur = ''
            else: cur += ch
        if cur.strip(): ops.append(cur)
        toks = []
        for o in ops:
            o = o.strip()
            toks.append(o.split()[0] if o else o)
        self.ops = toks
        self.mods = rest
        mn = self.mn
        self.kind = 'other'
        d = []; u = []
        R = [regs_of(x) for x in toks]
        flat = lambda l: [r for x in l for r in x]
        self.srcA = self.srcB = self.srcC = []
        if self.label: pass
        elif mn.startswith('v_mfma'):
            self.kind = 'mfma'
            d = R[0]; self.srcA, self.srcB, self.srcC = R[1], R[2], R[3]; u = flat(R[1:])
            self.passes = 4 if '16x16x32' in mn else 8
        elif mn.startswith('v_'):
            self.kind = 'valu'
            if mn.startswith('v_permlane') and 'swap' in mn:
                d = flat(R); u = flat(R)
            elif mn.startswith('v_cmp'):
                d = R[0]; u = flat(R[1:])
            elif mn.startswith(('v_add_co', 'v_sub_co', 'v_addc_co')):
                d = R[0] + R[1]; u = flat(R[2:])
            else:
                d = R[0]; u = flat(R[1:])
                if mn.startswith(('v_fmac', 'v_dot2c', 'v_writelane', 'v_fma_mixlo', 'v_fma_mixhi')) or '_dpp' in mn or '_sdwa' in mn:
                    u = u + R[0]
                if mn.startswith('v_cndmask') and len(toks) == 3: u = u + [('s', 'vcc')]
        elif mn.startswith('ds_read') or mn.startswith('ds_bpermute') or mn.startswith('ds_swizzle'):
            self.kind = 'ldsrd'; d = R[0]; u = flat(R[1:])
        elif mn.startswith('ds_'):
            self.kind = 'ldswr'; u = flat(R)
        elif mn.startswith(('buffer_load', 'global_load')):
            self.kind = 'vmrd'; d = R[0]; u = flat(R[1:])
        elif mn.startswith(('buffer_store', 'global_store', 'buffer_atomic', 'global_atomic')):
            self.kind = 'vmwr'; u = flat(R)
        elif mn.startswith(('s_load', 's_memtime', 's_memrealtime', 's_buffer_load')):
            self.kind = 'smem'; d = R[0]; u = flat(R[1:])
        elif mn.startswith('s_'):
            self.kind = 'salu'
            if mn.startswith(('s_cmp', 's_cbranch', 's_branch', 's_waitcnt', 's_nop', 's_barrier', 's_endpgm', 's_setprio', 's_sleep')):
                u = flat(R)
            else:
                d = R[0] if R else []; u = flat(R[1:])
                if 'saveexec' in mn: d = d + [('s', 'exec')]
        self.d = set(d); self.u = set(u)
        self.dpp = '_dpp' in mn
        self.permlane = mn.startswith('v_permlane')
        self.lanerd = mn.startswith(('v_readlane', 'v_readfirstlane'))
        self.trans = mn.startswith(TRANS)
        self.dl = mn.startswith('v_dot')
        self.states = 1
        if mn == 's_nop': self.states = int(toks[0]) + 1
        if self.label: self.states = 0

def need_states(p, c):
    n = 0
    vd = {r for r in p.d if r[0] in 'va'}
    sd = {r for r in p.d if r[0] == 's'}
    if p.kind == 'valu':
        if c.kind == 'mfma' and vd & c.u: n = max(n, 3 if p.dl else 2)
        if c.kind == 'valu':
            if (c.dpp or c.permlane) and vd & c.u: n = max(n, 2)
            if c.lanerd and vd & c.u: n = max(n, 1)
            if p.trans and not c.trans and vd & c.u: n = max(n, 1)
            if p.trans and c.trans and vd & c.u: n = max(n, 1)
            if sd & c.u: n = max(n, 4 if c.lanerd else 2)
            if 'sdwa' in p.mn and vd & (c.u | c.d): n = max(n, 1)
        if p.dl:
            if c.mn == p.mn:
                cs = set(regs_of(c.ops[1]) + regs_of(c.ops[2]))
                if vd & cs: n = max(n, 3)
            elif vd & (c.u | c.d): n = max(n, 3)
        if c.kind in ('vmrd', 'vmwr') and sd & c.u: n = max(n, 5)
        if c.kind == 'salu' and sd & c.u: n = max(n, 1)
        if ('s', 'exec') in sd and c.kind in ('valu', 'mfma'): n = max(n, 5)
    if p.kind == 'mfma':
        big = {4: 8, 8: 12}[p.passes]
        if c.kind == 'mfma':
            if vd & (set(c.srcA) | set(c.srcB)): n = max(n, big)
            if vd & set(c.srcC):
                if not (set(c.srcC) == vd and c.passes == p.passes): n = max(n, big - 2)
            elif vd & c.d: n = max(n, big)
        elif c.kind in ('valu', 'ldsrd', 'ldswr', 'vmrd', 'vmwr'):
            if vd & (c.u | c.d): n = max(n, big)
            if c.kind == 'valu' and set(p.srcC) & c.d: n = max(n, {4: 3, 8: 7}[p.passes])
            if c.kind in ('ldsrd', 'vmrd') and set(p.srcC) & c.d: n = max(n, {4: 3, 8: 7}[p.passes])
    if p.kind == 'vmwr' and ('x3' in p.mn or 'x4' in p.mn):
        if c.d & {r for r in p.u if r[0] in 'va'}: n = max(n, 2)
    if p.kind == 'salu' and ('s', 'm0') in sd and 'lds' in c.mods.split(): n = max(n, 1)
    return n

class Asm:
    def __init__(self):
        self.raw = []
    def e(self, s):
        if isinstance(s, (list, tuple)):
            for x in s: self.e(x)
        else: self.raw.append(s)
    def finalize(self, verbose=False):
        out = []
        vm = []
        lg = []
        smem = set()
        self.nops = []; self.waits = []
        for text in self.raw:
            ins = Ins(text)
            if ins.mn == 's_waitcnt':
                m = re.search(r'vmcnt\((\d+)\)', text)
                if m: vm = vm[max(0, len(vm) - int(m.group(1))):] if int(m.group(1)) else []
                m = re.search(r'lgkmcnt\((\d+)\)', text)
                if m:
                    k = int(m.group(1))
                    if k == 0: lg = []; smem = set()
                    elif not smem: lg = lg[max(0, len(lg) - k):]
                out.append(ins); continue
            touch = ins.u | ins.d
            wv = wl = None
            for i, regs in enumerate(vm):
                if regs & touch: wv = len(vm) - 1 - i
            for i, regs in enumerate(lg):
                if regs & touch: wl = len(lg) - 1 - i
            if smem & touch: wl = 0
            if wv is not None or wl is not None:
                parts = []
                if wv is not None:
                    wv = min(wv, 63); parts.append(f'vmcnt({wv})'); vm = vm[len(vm) - wv:] if wv else []
                if wl is not None:
                    wl = min(wl, 15); parts.append(f'lgkmcnt({wl})'); lg = lg[len(lg) - wl:] if wl else []
                    if wl == 0: smem = set()
                w = Ins('s_waitcnt ' + ' '.join(parts))
                out.append(w); self.waits.append((len(out), w.text, text))
            need = 0; dist = 0
            for p in reversed(out):
                if dist >= 14: break
                n = need_states(p, ins)
                need = max(need, n - dist)
                dist += p.states
            if need > 0:
                out.append(Ins(f's_nop {need-1}')); self.nops.append((len(out), need, text))
            out.append(ins)
            if ins.kind == 'vmrd': vm.append(set(ins.d))
            elif ins.kind == 'vmwr': vm.append(set())
            elif ins.kind == 'ldsrd': lg.append(set(ins.d))
            elif ins.kind == 'ldswr': lg.append(set())
            elif ins.kind == 'smem':
                if not ins.mn.startswith('s_mem'): smem |= ins.d
                else: smem |= ins.d
        self.out = out
        if verbose:
            print(f'{len(out)} instrs, {len(self.nops)} auto nops ({sum(n for _, n, _ in self.nops)} states), {len(self.waits)} auto waits')
        return '\n'.join((i.text if i.label else '    ' + i.text) for i in out)
```

```python
import sys, os
sys.path.insert(0, os.path.dirname(os.path.abspath(__file__)))
from asmlib import *

OUT = sys.argv[1] if len(sys.argv) > 1 else 'standalone__factorization_afm__recsys.s'
opts = dict(kv.split('=') for kv in sys.argv[2:])
TIMING = int(opts.get('time', 0))
DEBUG = opts.get('dbg', '')
TLBW = int(opts.get('tlbw', 0))

HDR = open('standalone__factorization_afm__recsys.s.ref').read().split('; Override launch')[0]

W8, W16 = 2432, 4736
WIMG = 0
BH = 8 * W16
UP = BH + 1024
WREG0 = UP + 2048
RS = 288
UROW, PROW = 32, 33
GT = 34 * RS
CS = 144
GTSZ = 32 * CS
WB = GT + 2 * GTSZ
LDS_TOTAL = WREG0 + 4 * WB

L = 1
BIAS, HH, OWN, ACC = 16, 48, 80, 96
BF = [128, 144]
GB = 160
ER = 176
E2 = 200
S2 = 204
STG = S2
LQ = 220
GA = 232
AG = 238
AK, AOWN, AROT = 244, 245, 246
AGW = 247
MX, DEN, NUM = 248, 249, 250
T0 = 251
WR = 96
WS = 128
ES = 160
UPV = 192
HP = 220
sWID, sB, sWB = 3, 4, 5
sABS, sSGN = 6, 7
sCW, sKW = 8, 9
sCE, sK2E = 10, 11
sCP, sKO = 12, 13
sCU, sSMC = 14, 15
sT = 34
sTAB = 40
sM3, sM4, sM5 = 44, 46, 48
sMX = 50
sQ = 52

A = Asm()
e = A.e
stampn = [0]
def stamp():
    if TIMING:
        e(f's_mem{"real" if TIMING == 2 else ""}time s[{60+2*stampn[0]}:{61+2*stampn[0]}]')
        stampn[0] += 1

DPPM = 'row_mask:0xf bank_mask:0xf'
def maxreduce(regs, op='v_max_u32'):
    r = []
    for k in (8, 4, 2, 1):
        for v in regs: r.append(f'{op}_dpp v{v}, v{v}, v{v} row_ror:{k} {DPPM}')
    for v in regs: r.append(f'{op}_dpp v{v}, v{v}, v{v} row_bcast:15 row_mask:0xa bank_mask:0xf')
    for v in regs: r.append(f'{op}_dpp v{v}, v{v}, v{v} row_bcast:31 row_mask:0xc bank_mask:0xf')
    return r

def div10(dst_x, dst_y, n, t):
    return [f'v_mul_u32_u24 v{t}, 205, v{n}',
            f'v_lshrrev_b32 v{t}, 11, v{t}',
            f'v_mul_u32_u24 v{dst_x}, 10, v{t}',
            f'v_sub_u32 v{dst_x}, v{n}, v{dst_x}',
            f'v_add3_u32 v{dst_y}, v{dst_x}, v{t}, 1',
            f'v_subrev_u32 v{t}, 10, v{dst_y}',
            f'v_min_u32 v{dst_y}, v{dst_y}, v{t}']

def prologue():
    e('s_cmp_ge_u32 s2, 256')
    e('s_cbranch_scc1 L_end')
    if TIMING: e('s_memrealtime s[98:99]')
    stamp()
    e('s_load_dwordx16 s[16:31], s[0:1], 0')
    e('s_load_dwordx2 s[32:33], s[0:1], 64')
    e('v_lshrrev_b32 v2, 6, v0')
    e(f'v_and_b32 v{L}, 63, v0')
    e(f'v_readfirstlane_b32 s{sWID}, v2')
    e(f'v_and_b32 v3, 15, v0')
    e(f's_lshl_b32 s{sB}, s2, 2')
    e(f's_add_u32 s{sB}, s{sB}, s{sWID}')
    e(f's_mul_i32 s{sT}, s{sB}, 104')
    e(f'v_lshl_add_u32 v5, v3, 2, s{sT}')
    e('v_min_u32 v6, 9, v3')
    e(f'v_lshl_add_u32 v6, v6, 2, s{sT}')
    e(f'v_lshrrev_b32 v7, 2, v{L}')
    e('v_and_b32 v8, 3, v0')
    e('v_lshlrev_b32 v8, 4, v8')
    e('v_lshl_add_u32 v8, v2, 6, v8')
    e('v_lshl_add_u32 v9, v7, 11, v8')
    e(f'v_lshlrev_b32 v10, 2, v{L}')
    e('v_and_b32 v11, 31, v0')
    e('v_lshl_add_u32 v11, v2, 5, v11')
    e('v_lshlrev_b32 v12, 1, v11')
    e(f'v_lshrrev_b32 v4, 4, v{L}')
    e('s_waitcnt lgkmcnt(0)')
    stamp()
    e('global_load_dword v13, v5, s[16:17]')
    e('global_load_dword v14, v6, s[16:17] offset:64')
    if TLBW:
        e(f'v_lshlrev_b32 v15, 21, v3')
        e(f'v_min_u32 v15, 0x1800000, v15')
        e(f'global_load_dword v{T0+4}, v15, s[18:19]')
    e(f'global_load_dwordx4 {vr(HP,4)}, v8, s[28:29]')
    e(f'global_load_dword v{T0+1}, v10, s[30:31]')
    e(f'global_load_ushort v{T0+2}, v12, s[26:27]')
    e(f'global_load_ushort v{T0+3}, v12, s[28:29]')
    for q in range(8):
        e(f'global_load_dwordx4 {vr(WR+4*q,4)}, v9, s[24:25] offset:{256*q}')
    e(f's_mov_b32 s{sTAB}, s18'); e(f's_mov_b32 s{sTAB+1}, s19')
    e(f's_mov_b32 s{sTAB+2}, 25600000'); e(f's_mov_b32 s{sTAB+3}, 0x00020000')
    e(f's_mul_i32 s{sWB}, s{sWID}, {WB}')
    e(f's_add_u32 s{sWB}, s{sWB}, {WREG0}')
    e(f's_mov_b32 s{sABS}, 0x7fff7fff'); e(f's_mov_b32 s{sSGN}, 0x80008000')
    e(f's_mov_b32 s{sM3}, -1'); e(f's_mov_b32 s{sM3+1}, 0x00ffffff')
    e(f's_mov_b32 s{sM4}, 0x0000ffff'); e(f's_mov_b32 s{sM4+1}, 0x0000ffff')
    e(f's_mov_b32 s{sM5}, -1'); e(f's_mov_b32 s{sM5+1}, 0x00001fff')
    e(f's_mov_b32 s{sQ}, 0x11111111'); e(f's_mov_b32 s{sQ+1}, 0x11111111')
    e(f's_movk_i32 s{sT+1}, {RS}')
    e(f's_movk_i32 s{sT+2}, {CS}')
    e('v_lshlrev_b32 v15, 4, v4')
    e(f'v_add_u32 v{AK}, s{sWB}, v15')
    e(f'v_mad_u32_u24 v{AOWN}, v3, s{sT+1}, v{AK}')
    for t in range(3):
        e(f'v_add_u32 v{T0}, {16*t}, v3')
        e(div10(AG+2*t, AG+2*t+1, T0, MX))
        e(f'v_mad_u32_u24 v{AG+2*t}, v{AG+2*t}, s{sT+1}, v{AK}')
        e(f'v_mad_u32_u24 v{AG+2*t+1}, v{AG+2*t+1}, s{sT+1}, v{AK}')
    e('v_lshl_add_u32 v13, v13, 8, v15')
    stamp()
    for s in range(4):
        e(f'buffer_load_dwordx4 {vr(OWN+4*s,4)}, v13, s[{sTAB}:{sTAB+3}], 0 offen offset:{64*s}')
    e('v_lshl_add_u32 v14, v14, 8, v15')
    for s in range(4):
        e(f'buffer_load_dwordx4 {vr(S2+4*s,4)}, v14, s[{sTAB}:{sTAB+3}], 0 offen offset:{64*s}')
    e(f's_add_u32 s{sT+3}, s{sWB}, {GT}')
    e(f'v_lshl_add_u32 v{T0}, v3, 2, s{sT+3}')
    e(f'v_mad_u32_u24 v{GA+0}, v4, s{sT+2}, v{T0}')
    e(f'v_add_u32 v{GA+1}, {20*CS}, v{GA+0}')
    e(f'v_add_u32 v{GA+0}, {16*CS}, v{GA+0}')
    e(f'v_lshrrev_b32 v{MX}, 1, v4')
    e(f'v_mad_u32_u24 v{GA+4}, v{MX}, s{sT+2}, v{T0}')
    e(f'v_add_u32 v{GA+4}, {24*CS}, v{GA+4}')
    e(f'v_add3_u32 v{MX}, v3, v4, 1')
    e(f'v_and_b32 v{DEN}, 15, v{MX}')
    e(f'v_mad_u32_u24 v{GA+2}, v{DEN}, s{sT+2}, v{T0}')
    e(f'v_add_u32 v{MX}, 4, v{MX}')
    e(f'v_and_b32 v{DEN}, 15, v{MX}')
    e(f'v_mad_u32_u24 v{GA+3}, v{DEN}, s{sT+2}, v{T0}')
    e(div10(DEN, NUM, L, MX))
    e(f'v_lshl_add_u32 v{DEN}, v{DEN}, 2, s{sT+3}')
    e(f'v_mad_u32_u24 v{GA+5}, v{NUM}, s{sT+2}, v{DEN}')
    e(f'v_add_u32 v{GA+5}, {16*CS+64}, v{GA+5}')
    e(f'v_mad_u32_u24 v{AGW}, v3, s{sT+2}, v15')
    e(f'v_add_u32 v{AGW}, s{sT+3}, v{AGW}')
    e('v_and_b32 v5, 1, v7')
    e(f'v_mul_u32_u24 v5, {W8}, v5')
    e('v_lshrrev_b32 v6, 1, v7')
    e(f'v_mul_u32_u24 v6, {W16}, v6')
    e('v_add3_u32 v5, v5, v6, v8')
    e('v_lshlrev_b32 v9, 5, v7')
    e('v_lshl_add_u32 v9, v2, 9, v9')
    e('v_lshrrev_b32 v6, 2, v3')
    e(f'v_mul_u32_u24 v6, 288, v6')
    e('v_and_b32 v13, 1, v4')
    e(f'v_mul_u32_u24 v13, {W8}, v13')
    e('v_lshrrev_b32 v14, 1, v4')
    e(f'v_mul_u32_u24 v14, {W16}, v14')
    e('v_add3_u32 v6, v6, v13, v14')
    e('v_and_b32 v13, 3, v0')
    e('v_lshl_add_u32 v6, v13, 3, v6')
    e(f'v_lshrrev_b32 v13, 5, v{L}')
    e('v_lshlrev_b32 v13, 9, v13')
    e('v_lshl_add_u32 v12, v11, 2, v13')
    e(f'v_cmp_lt_u32 vcc, 31, v{L}')
    PV = T0 + 1
    e(f'v_and_b32 v13, s{sSGN}, v{PV}')
    e(f'v_and_b32 v{PV}, s{sABS}, v{PV}')
    e(f'v_pk_max_u16 v14, v{PV}, v{PV} op_sel:[0,1] op_sel_hi:[1,0]')
    e(f'v_cndmask_b32 v{T0+2}, v{T0+2}, v{T0+3}, vcc')
    e(f'v_lshlrev_b32 v{T0+2}, 16, v{T0+2}')
    for q in range(8):
        for i in range(4):
            r = WR + 4*q + i
            c = '0' if i == 0 else f'v{UPV+q}'
            e(f'v_dot2_f32_bf16 v{UPV+q}, v{r}, v{HP+i}, {c}')
        for i in range(4):
            r = WR + 4*q + i
            e(f'v_and_b32 v{WS+4*q+i}, s{sSGN}, v{r}')
            e(f'v_and_b32 v{r}, s{sABS}, v{r}')
        for i in range(4):
            r = WR + 4*q + i
            if q == 0 and i == 0: continue
            if q == 0 and i == 1: e(f'v_pk_max_u16 v{MX}, v{r-1}, v{r}')
            else: e(f'v_pk_max_u16 v{MX}, v{MX}, v{r}')
    stamp()
    e(f'v_pk_max_u16 v{MX}, v{MX}, v{MX} op_sel:[0,1] op_sel_hi:[1,0]')
    red = maxreduce([MX, 14])
    quad = [f'v_add_f32_dpp v{UPV+q}, v{UPV+q}, v{UPV+q} quad_perm:[1,0,3,2] {DPPM}' for q in range(8)]
    quad += [f'v_add_f32_dpp v{UPV+q}, v{UPV+q}, v{UPV+q} quad_perm:[2,3,0,1] {DPPM}' for q in range(8)]
    qi = 0
    e(quad[0:2]); qi = 2
    for k in range(6):
        e(red[2*k:2*k+2]); e(quad[qi:qi+2]); qi += 2
    e(quad[qi:])
    e(f'v_readlane_b32 s{sT}, v{MX}, 63')
    e(f'v_readlane_b32 s{sT+1}, v14, 63')
    e(f's_mov_b64 exec, s[{sQ}:{sQ+1}]')
    e(f'ds_write_b128 v9, {vr(UPV,4)} offset:{UP}')
    e(f'ds_write_b128 v9, {vr(UPV+4,4)} offset:{UP+16}')
    e('s_mov_b64 exec, -1')
    e(f's_bfe_u32 s{sT}, s{sT}, 0x80007')
    e(f's_max_u32 s{sT}, s{sT}, 101')
    e(f's_sub_u32 s{sKW}, 141, s{sT}')
    e(f's_sub_u32 s{sT}, s{sT}, 29')
    e(f's_mul_i32 s{sCW}, s{sT}, 0x800080')
    e(f's_bfe_u32 s{sT+1}, s{sT+1}, 0x80007')
    e(f's_max_u32 s{sT+1}, s{sT+1}, 60')
    e(f's_sub_u32 s{sKO}, s{sT+1}, 134')
    e(f's_sub_u32 s{sT+1}, s{sT+1}, 22')
    e(f's_mul_i32 s{sCP}, s{sT+1}, 0x800080')
    e(f's_sub_u32 s{sT}, 0, s{sKW}')
    for q in range(8):
        for i in range(4):
            r = WR + 4*q + i
            e(f'v_pk_sub_u16 v{r}, v{r}, s{sCW} clamp')
        for i in range(4):
            r = WR + 4*q + i
            e(f'v_lshl_or_b32 v{r}, v{r}, 3, v{WS+4*q+i}')
        e(f'ds_write_b128 v5, {vr(WR+4*q,4)} offset:{WIMG+288*q}')
    e(f'v_mov_b32 v14, s{sKW}')
    e(f'v_mov_b32 v{T0+3}, s{sT}')
    e(f'v_cndmask_b32 v14, v14, v{T0+3}, vcc')
    e(f'v_ldexp_f32 v{T0+2}, v{T0+2}, v14')
    e(f'ds_write_b32 v12, v{T0+2} offset:{BH}')
    e(f'v_pk_sub_u16 v{PV}, v{PV}, s{sCP} clamp')
    e(f'v_lshl_or_b32 v{PV}, v{PV}, 3, v13')
    e(f'v_add_u32 v10, s{sWB}, v10')
    e(f'ds_write_b32 v10, v{PV} offset:{PROW*RS}')
    e(f'v_lshlrev_b32 v9, 3, v{L}')
    e('s_waitcnt lgkmcnt(0)')
    stamp()
    e('s_barrier')
    stamp()
    for w in range(4):
        e(f'ds_read_b64 {vr(UPV+2*w,2)}, v9 offset:{UP+512*w}')
    for mt in range(8):
        e(f'ds_read_b128 {vr(BIAS+4*mt,4)}, v15 offset:{BH+64*mt}')
    def wfrag(mt):
        r = []
        for s in range(4):
            a = (mt*4+s)*4
            r.append(f'ds_read_b64_tr_b16 {ar(a,2)}, v6 offset:{WIMG+2*W16*s+32*mt}')
            r.append(f'ds_read_b64_tr_b16 {ar(a+2,2)}, v6 offset:{WIMG+2*W16*s+1152+32*mt}')
        return r
    wf = [x for mt in range(8) for x in wfrag(mt)]
    hf = [f'ds_read_b128 {vr(HH+4*mt,4)}, v15 offset:{BH+512+64*mt}' for mt in range(8)]
    lds = wf[:8] + hf + wf[8:]
    uadd = [f'v_add_f32 v{UPV}, v{UPV}, v{UPV+2}', f'v_add_f32 v{UPV+1}, v{UPV+1}, v{UPV+3}',
            f'v_add_f32 v{UPV+4}, v{UPV+4}, v{UPV+6}', f'v_add_f32 v{UPV+5}, v{UPV+5}, v{UPV+7}',
            f'v_add_f32 v{UPV}, v{UPV}, v{UPV+4}', f'v_add_f32 v{UPV+1}, v{UPV+1}, v{UPV+5}',
            f'v_max_f32 v14, |v{UPV}|, |v{UPV+1}|']
    e(lds[:4]); li = 4
    for x in uadd:
        e(x); e(lds[li]); li += 1
    ER16 = [OWN + i for i in range(16)] + [S2 + i for i in range(16)]
    pre = []
    for k, r in enumerate(ER16):
        pre.append(f'v_and_b32 v{ES+k}, s{sSGN}, v{r}')
        pre.append(f'v_and_b32 v{r}, s{sABS}, v{r}')
        if k == 1: pre.append(f'v_pk_max_u16 v{MX}, v{ER16[0]}, v{r}')
        elif k > 1: pre.append(f'v_pk_max_u16 v{MX}, v{MX}, v{r}')
    NEARLY = int(opts.get('nearly', 24))
    e(lds[li:li+NEARLY]); li += NEARLY
    rem = lds[li:]
    for k, x in enumerate(pre):
        e(x)
        lo, hi = len(rem)*k//len(pre), len(rem)*(k+1)//len(pre)
        e(rem[lo:hi])
    stamp()
    e(f'v_pk_max_u16 v{MX}, v{MX}, v{MX} op_sel:[0,1] op_sel_hi:[1,0]')
    e(f'v_mov_b32_dpp v{AROT}, v{AOWN} row_ror:15 {DPPM}')
    e(maxreduce([MX, 14]))
    e(f'v_readlane_b32 s{sT}, v{MX}, 63')
    e(f'v_readlane_b32 s{sT+1}, v14, 63')
    e(f's_bfe_u32 s{sT}, s{sT}, 0x80007')
    e(f's_max_u32 s{sT}, s{sT}, 104')
    e(f's_min_u32 s{sT}, s{sT}, 190')
    e(f's_sub_u32 s{sT+2}, s{sT}, 22')
    e(f's_mul_i32 s{sCE}, s{sT+2}, 0x800080')
    def conv(k):
        r = ER16[k]
        return [f'v_pk_sub_u16 v{r}, v{r}, s{sCE} clamp', f'v_lshl_or_b32 v{r}, v{r}, 3, v{ES+k}']
    sal = [f's_sub_u32 s{sK2E}, 134, s{sT}',
           f's_lshl_b32 s{sK2E}, s{sK2E}, 1',
           f's_sub_u32 s{sKO}, s{sKO}, s{sK2E}',
           f's_add_u32 s{sT+2}, s{sK2E}, 1',
           f's_lshl_b32 s{sT+2}, s{sT+2}, 23',
           f's_sub_u32 s{sSMC}, 0x3fb8aa3b, s{sT+2}',
           f's_lshr_b32 s{sT+1}, s{sT+1}, 23',
           f's_max_u32 s{sT+1}, s{sT+1}, 60',
           f's_sub_u32 s{sT+3}, 134, s{sT+1}',
           f's_sub_u32 s{sT+1}, s{sT+1}, 7',
           f's_lshl_b32 s{sCU}, s{sT+1}, 23']
    for s in range(4):
        c = [conv(4*s+i) for i in range(4)]
        e([x[0] for x in c]); e([x[1] for x in c])
        e(f'ds_write_b128 v{AOWN}, {vr(OWN+4*s,4)} offset:{64*s}')
    for s in (3, 2, 1, 0):
        e(f'ds_read_b128 {vr(BF[0]+4*s,4)}, v{AROT} offset:{64*s}')
    e(sal)
    for s in range(4):
        c = [conv(16+4*s+i) for i in range(4)]
        e([x[0] for x in c]); e([x[1] for x in c])
        e(f'ds_write_b128 v{AOWN}, {vr(S2+4*s,4)} offset:{16*RS+64*s}')
    e(f'v_ldexp_f32 v{UPV}, v{UPV}, s{sT+3}')
    e(f'v_ldexp_f32 v{UPV+1}, v{UPV+1}, s{sT+3}')
    e(f'v_cvt_pk_f16_f32 v{UPV}, v{UPV}, v{UPV+1}')
    e(f'ds_write_b32 v10, v{UPV} offset:{UROW*RS}')
    for i in range(4): e(f'v_ldexp_f32 v{BIAS+i}, v{BIAS+i}, s{sK2E}')
    for i in range(4): e(f'v_pk_mul_f16 v{BF[0]+i}, v{BF[0]+i}, v{OWN+i}')
    stamp()

def slot(q, g): return ER + 4*q + g
TILES = [('c', t, slot(2 + (t-1)//4, (t-1) % 4)) for t in range(1, 9)]
TILES += [('b', m, slot(m//4, m % 4)) for m in range(8)]
TILES += [('g', t, slot(5, t)) for t in range(3)]
TILES += [('b', 8, slot(4, 0)), ('b', 9, slot(4, 2))]
NT = len(TILES)

class Q:
    def __init__(self, name): self.name = name; self.ops = []
    def add(self, text, ready, dead, cost=1): self.ops.append([text, ready, dead, cost])

def main_stream():
    mf = []
    base = []
    gram_at = {1: 0, 3: 1, 5: 2, 7: 3}
    gbase = {}
    for T, (kind, par, er) in enumerate(TILES):
        base.append(len(mf))
        b = BF[T & 1]
        for mt in range(8):
            for s in range(4):
                c = vr(BIAS+4*mt, 4) if s == 0 else vr(ACC+4*mt, 4)
                mf.append(f'v_mfma_f32_16x16x32_f16 {vr(ACC+4*mt,4)}, {ar((mt*4+s)*4,4)}, {vr(b+4*s,4)}, {c}')
        if T in gram_at:
            gs = gram_at[T]
            gbase[gs] = len(mf)
            targets = [(OWN, LQ), (S2, LQ+4)] if gs < 2 else [(S2, LQ+8)]
            for bb, d in targets:
                for s in range(4):
                    c = '0' if s == 0 else vr(d, 4)
                    mf.append(f'v_mfma_f32_16x16x32_f16 {vr(d,4)}, {vr(GB+4*s,4)}, {vr(bb+4*s,4)}, {c}')
    NM = len(mf)
    base.append(NM + 1000)
    qs = []
    LAG = int(opts.get('lag', 3))
    RDLAT = int(opts.get('rdlat', 9))
    qf = Q('fma'); qs.append(qf)
    done_tile = {}
    for T, (kind, par, er) in enumerate(TILES):
        e2 = E2 + (T & 1)
        for mt in range(8):
            rdy = base[T] + 4*mt + 3 + LAG
            dead = min(base[T+1] + 4*mt - 1, rdy + 6)
            for r in range(4):
                acc = er if (r & 1) == 0 else e2
                x = ACC + 4*mt + r; h = HH + 4*mt + r
                if mt == 0 and r < 2: qf.add(f'v_mul_f32 v{acc}, |v{x}|, v{h}', rdy, dead)
                else: qf.add(f'v_fma_f32 v{acc}, |v{x}|, v{h}, v{acc}', rdy, dead)
        qf.add(f'v_add_f32 v{er}, v{er}, v{e2}', rdy, dead + 2)
        done_tile[T] = rdy + 4
    qg = Q('gen'); qs.append(qg)
    for i in range(4, 16):
        qg.add(f'v_pk_mul_f16 v{BF[0]+i}, v{BF[0]+i}, v{OWN+i}', -1, i//4 - 2)
    qb = Q('bias'); qs.append(qb)
    for mt in range(1, 8):
        for r in range(4): qb.add(f'v_ldexp_f32 v{BIAS+4*mt+r}, v{BIAS+4*mt+r}, s{sK2E}', -1, 4*mt - 2)
    for T in range(1, NT):
        kind, par, er = TILES[T]
        b = BF[T & 1]
        r0 = base[T-1]
        if T == 1: r0 = 3
        if kind == 'c':
            qg.add(f'v_mov_b32_dpp v{AROT}, v{AOWN} row_ror:{16-par} {DPPM}', r0 - 8, r0)
            for s in (3, 2, 1, 0): qg.add(f'ds_read_b128 {vr(b+4*s,4)}, v{AROT} offset:{64*s}', r0, r0 + 3)
            other = OWN
        elif kind == 'b':
            for s in (3, 2, 1, 0): qg.add(f'ds_read_b128 {vr(b+4*s,4)}, v{AK} offset:{(16+par)*RS+64*s}', r0, r0 + 3)
            other = OWN
        else:
            for s in (3, 2, 1, 0): qg.add(f'ds_read_b128 {vr(STG+4*s,4)}, v{AG+2*par} offset:{16*RS+64*s}', r0, r0 + 3)
            for s in (3, 2, 1, 0): qg.add(f'ds_read_b128 {vr(b+4*s,4)}, v{AG+2*par+1} offset:{16*RS+64*s}', r0, r0 + 5)
            other = STG
        r1 = r0 + RDLAT + (3 if kind == 'g' else 1)
        for i in range(16):
            span = base[T] - 2 - r1
            qg.add(f'v_pk_mul_f16 v{b+i}, v{b+i}, v{other+i}', r1, r1 + span * (i + 1) // 16, 2 if i == 0 else 1)
    qr = Q('gram'); qs.append(qr)
    prev_end = 4
    for gs in range(4):
        row = UROW if gs % 2 == 0 else PROW
        other = OWN if gs < 2 else S2
        gb = gbase[gs]
        r0 = prev_end
        for s in (3, 2, 1, 0): qr.add(f'ds_read_b128 {vr(GB+4*s,4)}, v{AK} offset:{row*RS+64*s}', r0, gb - 30)
        for i in range(16):
            qr.add(f'v_pk_mul_f16 v{GB+i}, v{GB+i}, v{other+i}', r0 + RDLAT + 3, gb - 2, 2 if i == 0 else 1)
        n = 8 if gs < 2 else 4
        tab = GTSZ * (gs % 2)
        if gs < 2:
            qr.add(f'ds_write_b128 v{AGW}, {vr(LQ,4)} offset:{tab}', gb + 3 + LAG, gb + 20)
            qr.add(f'ds_write_b128 v{AGW}, {vr(LQ+4,4)} offset:{tab+16*CS}', gb + 7 + LAG, gb + 20)
        else:
            qr.add(f'ds_write_b128 v{AGW}, {vr(LQ+8,4)} offset:{tab+16*CS+64}', gb + 3 + LAG, gb + 20)
        prev_end = gb + n
    for q in range(6):
        qr.add(f'ds_read2st64_b32 {vr(LQ+2*q,2)}, v{GA+q} offset0:0 offset1:{GTSZ//256}', prev_end + 24, prev_end + 80)
    gath = prev_end + 60
    qo = Q('red'); qs.append(qo)
    tile_of = {er: T for T, (_, _, er) in enumerate(TILES)}
    first = True
    for q in (2, 3, 0, 1, 5):
        t = [slot(q, g) for g in range(4)]
        rdy = max(done_tile[tile_of[x]] for x in t if x in tile_of) + 4
        rdy = max(rdy, gath)
        dead = min(rdy + 60, NM - 8)
        seq = [f'v_permlane32_swap_b32 v{t[0]}, v{t[2]}', f'v_permlane32_swap_b32 v{t[1]}, v{t[3]}',
               f'v_add_f32 v{t[0]}, v{t[0]}, v{t[2]}', f'v_add_f32 v{t[1]}, v{t[1]}, v{t[3]}', None,
               f'v_permlane16_swap_b32 v{t[0]}, v{t[1]}', f'v_add_f32 v{t[0]}, v{t[0]}, v{t[1]}',
               f'v_fma_f32 v{t[0]}, v{LQ+2*q}, s{sCU}, v{t[0]}']
        if q == 3: seq.append(f'v_cndmask_b32 v{t[0]}, v{T0}, v{t[0]}, s[{sM3}:{sM3+1}]')
        if q == 5: seq.append(f'v_cndmask_b32 v{t[0]}, v{T0}, v{t[0]}, s[{sM5}:{sM5+1}]')
        if first:
            seq = [f'v_mov_b32 v{T0}, 0xff800000'] + seq + [f'v_mov_b32 v{MX}, v{t[0]}']; first = False
        else: seq.append(f'v_max_f32 v{MX}, v{MX}, v{t[0]}')
        for x in seq:
            if x is None: rdy += 2; continue
            qo.add(x, rdy, dead); rdy += 1
    CAP = int(opts.get('cap', 2))
    over = 0
    def emit_gap(k, cap):
        nonlocal over
        used = 0
        while True:
            cand = [q for q in qs if q.ops and q.ops[0][1] <= k]
            if not cand: break
            q = min(cand, key=lambda q: q.ops[0][2])
            op = q.ops[0]
            if used + op[3] > cap and op[2] > k: break
            q.ops.pop(0); e(op[0]); used += op[3]
        if used > cap: over += used - cap
    emit_gap(-1, 0)
    for k in range(NM):
        e(mf[k])
        emit_gap(k, CAP)
    stamp()
    emit_gap(10**6, 10**6)
    print('mfma', NM, 'overfull slots', over)

def tail():
    a, b = slot(4, 0), slot(4, 2)
    t = slot(4, 1)
    e(f'v_permlane32_swap_b32 v{a}, v{b}')
    e(f'v_add_f32 v{a}, v{a}, v{b}')
    e(f'v_mov_b32 v{t}, v{a}')
    e(f'v_permlane16_swap_b32 v{a}, v{t}')
    e(f'v_add_f32 v{a}, v{a}, v{t}')
    e(f'v_fma_f32 v{a}, v{LQ+8}, s{sCU}, v{a}')
    e(f'v_cndmask_b32 v{a}, v{T0}, v{a}, s[{sM4}:{sM4+1}]')
    e(f'v_max_f32 v{MX}, v{MX}, v{a}')
    e(maxreduce([MX], 'v_max_f32'))
    e(f'v_readlane_b32 s{sMX}, v{MX}, 63')
    R = [slot(q, 0) for q in range(6)]
    for r in R: e(f'v_subrev_f32 v{r}, s{sMX}, v{r}')
    for r in R: e(f'v_mul_f32 v{r}, s{sSMC}, v{r}')
    for r in R: e(f'v_exp_f32 v{r}, v{r}')
    e(f'v_add_f32 v{DEN}, v{R[0]}, v{R[1]}')
    e(f'v_mul_f32 v{NUM}, v{R[0]}, v{LQ+1}')
    for q in range(1, 6):
        if q > 1: e(f'v_add_f32 v{DEN}, v{DEN}, v{R[q]}')
        e(f'v_fmac_f32 v{NUM}, v{R[q]}, v{LQ+2*q+1}')
    e(maxreduce([DEN, NUM], 'v_add_f32'))
    e(f'v_rcp_f32 v{DEN}, v{DEN}')
    e(f's_lshl_b32 s{sT}, s{sB}, 1')
    e(f'v_mov_b32 v2, s{sT}')
    e(f'v_mul_f32 v{NUM}, v{NUM}, v{DEN}')
    e(f'v_ldexp_f32 v{NUM}, v{NUM}, s{sKO}')
    e(f's_mov_b32 exec_lo, 0')
    e(f's_mov_b32 exec_hi, 0x80000000')
    e(f'v_cvt_pk_bf16_f32 v{NUM}, v{NUM}, v{NUM}')
    e(f'global_store_short v2, v{NUM}, s[32:33]')
    if TIMING:
        e('s_waitcnt vmcnt(0)')
        stamp()
        e('s_memrealtime s[100:101]')
        e('s_load_dwordx2 s[56:57], s[0:1], 80')
        e('s_waitcnt lgkmcnt(0)')
        e(f's_lshl_b32 s{sT}, s{sB}, 6')
        e(f'v_mov_b32 v2, s{sT}')
        e('v_mov_b32 v3, s98'); e('global_store_dword v2, v3, s[56:57]')
        e('v_mov_b32 v3, s100'); e('global_store_dword v2, v3, s[56:57] offset:4')
        for i in range(stampn[0]):
            e(f'v_mov_b32 v3, s{60+2*i}'); e(f'global_store_dword v2, v3, s[56:57] offset:{8+4*i}')
    e('L_end:')

def dump(regs, tag):
    e('s_waitcnt vmcnt(0) lgkmcnt(0)')
    e('s_nop 7'); e('s_nop 7')
    e('s_load_dwordx2 s[56:57], s[0:1], 80')
    e('s_waitcnt lgkmcnt(0)')
    e(f's_lshl_b32 s58, s{sB}, 16')
    e(f'v_lshl_add_u32 v2, v{L}, 2, s58')
    for k, r in enumerate(regs):
        if r.startswith('a'):
            e(f'v_accvgpr_read_b32 v3, {r}'); r = 'v3'
        elif r.startswith('s'):
            e(f'v_mov_b32 v3, {r}'); r = 'v3'
        e(f'global_store_dword v2, {r}, s[56:57]')
        e('s_waitcnt vmcnt(0)')
        e('v_add_u32 v2, 256, v2')
    e('s_endpgm')

prologue()
if DEBUG == 'pro':
    dump([f'v{i}' for i in range(16, 96)] + [f'v{S2+i}' for i in range(16)] + [f'v{BF[0]+i}' for i in range(16)] +
         [f's{i}' for i in range(8, 16)] + [f'a{i}' for i in range(128)], 'pro')
main_stream()
if DEBUG == 'end':
    dump([f'v{ER+i}' for i in range(24)] + [f'v{LQ+i}' for i in range(12)] + [f's{i}' for i in range(8, 16)] + [f'v{MX}'], 'end')
tail()
body = A.finalize(verbose=True)
if int(opts.get('v', 0)):
    for x in A.nops: print('nop', x)
    for x in A.waits: print('wait', x)

asm = HDR + f'''; @launch grid=(256,1,1) block=(256,1,1) lds={LDS_TOTAL}
.amdgcn_target "amdgcn-amd-amdhsa--gfx950"
.text
.globl standalone__factorization_afm__recsys_kernel
.p2align 8
.type standalone__factorization_afm__recsys_kernel,@function
standalone__factorization_afm__recsys_kernel:
''' + body + '''
s_endpgm
.section .rodata,"a"
.p2align 6
.amdhsa_kernel standalone__factorization_afm__recsys_kernel
  .amdhsa_next_free_vgpr 384
  .amdhsa_next_free_sgpr 102
  .amdhsa_accum_offset 256
  .amdhsa_group_segment_fixed_size 0
  .amdhsa_kernarg_size 88
  .amdhsa_user_sgpr_count 2
  .amdhsa_user_sgpr_kernarg_segment_ptr 1
  .amdhsa_system_sgpr_workgroup_id_x 1
.end_amdhsa_kernel
'''
open(OUT, 'w').write(asm)
```

```python
import sys, os
sys.path.insert(0, os.path.dirname(os.path.abspath(__file__)))
from asmlib import *

OUT = sys.argv[1] if len(sys.argv) > 1 else 'standalone__factorization_afm__recsys.s'
opts = dict(kv.split('=') for kv in sys.argv[2:])
TIMING = int(opts.get('time', 0))
DEBUG = opts.get('dbg', '')
TLBW = int(opts.get('tlbw', 0))

HDR = open('standalone__factorization_afm__recsys.s.ref').read().split('; Override launch')[0]

W8, W16 = 2432, 4736
WIMG = 0
BH = 8 * W16
UP = BH + 1024
WREG0 = UP + 2048
RS = 288
UROW, PROW = 32, 33
GT = 34 * RS
CS = 144
GTSZ = 32 * CS
WB = GT + 2 * GTSZ
LDS_TOTAL = WREG0 + 4 * WB

L = 1
BIAS, HH, OWN, ACC = 16, 48, 80, 96
BF = [128, 144]
GB = 160
ER = 176
E2 = 200
S2 = 204
STG = S2
LQ = 220
GA = 232
AG = 238
AK, AOWN, AROT = 244, 245, 246
AGW = 247
MX, DEN, NUM = 248, 249, 250
T0 = 251
WR = 96
WS = 128
ES = 160
UPV = 192
HP = 220
sWID, sB, sWB = 3, 4, 5
sABS, sSGN = 6, 7
sCW, sKW = 8, 9
sCE, sK2E = 10, 11
sCP, sKO = 12, 13
sCU, sSMC = 14, 15
sT = 34
sTAB = 40
sM3, sM4, sM5 = 44, 46, 48
sMX = 50
sQ = 52

A = Asm()
e = A.e
stampn = [0]
def stamp():
    if TIMING:
        e(f's_mem{"real" if TIMING == 2 else ""}time s[{60+2*stampn[0]}:{61+2*stampn[0]}]')
        stampn[0] += 1

DPPM = 'row_mask:0xf bank_mask:0xf'
def maxreduce(regs, op='v_max_u32'):
    r = []
    for k in (8, 4, 2, 1):
        for v in regs: r.append(f'{op}_dpp v{v}, v{v}, v{v} row_ror:{k} {DPPM}')
    for v in regs: r.append(f'{op}_dpp v{v}, v{v}, v{v} row_bcast:15 row_mask:0xa bank_mask:0xf')
    for v in regs: r.append(f'{op}_dpp v{v}, v{v}, v{v} row_bcast:31 row_mask:0xc bank_mask:0xf')
    return r

def div10(dst_x, dst_y, n, t):
    return [f'v_mul_u32_u24 v{t}, 205, v{n}',
            f'v_lshrrev_b32 v{t}, 11, v{t}',
            f'v_mul_u32_u24 v{dst_x}, 10, v{t}',
            f'v_sub_u32 v{dst_x}, v{n}, v{dst_x}',
            f'v_add3_u32 v{dst_y}, v{dst_x}, v{t}, 1',
            f'v_subrev_u32 v{t}, 10, v{dst_y}',
            f'v_min_u32 v{dst_y}, v{dst_y}, v{t}']

def prologue():
    e('s_cmp_ge_u32 s2, 256')
    e('s_cbranch_scc1 L_end')
    if TIMING: e('s_memrealtime s[98:99]')
    stamp()
    e('s_load_dwordx16 s[16:31], s[0:1], 0')
    e('s_load_dwordx2 s[32:33], s[0:1], 64')
    e('v_lshrrev_b32 v2, 6, v0')
    e(f'v_and_b32 v{L}, 63, v0')
    e(f'v_readfirstlane_b32 s{sWID}, v2')
    e(f'v_and_b32 v3, 15, v0')
    e(f's_lshl_b32 s{sB}, s2, 2')
    e(f's_add_u32 s{sB}, s{sB}, s{sWID}')
    e(f's_mul_i32 s{sT}, s{sB}, 104')
    e(f'v_lshl_add_u32 v5, v3, 2, s{sT}')
    e('v_min_u32 v6, 9, v3')
    e(f'v_lshl_add_u32 v6, v6, 2, s{sT}')
    e(f'v_lshrrev_b32 v7, 2, v{L}')
    e('v_and_b32 v8, 3, v0')
    e('v_lshlrev_b32 v8, 4, v8')
    e('v_lshl_add_u32 v8, v2, 6, v8')
    e('v_lshl_add_u32 v9, v7, 11, v8')
    e(f'v_lshlrev_b32 v10, 2, v{L}')
    e('v_and_b32 v11, 31, v0')
    e('v_lshl_add_u32 v11, v2, 5, v11')
    e('v_lshlrev_b32 v12, 1, v11')
    e(f'v_lshrrev_b32 v4, 4, v{L}')
    e('s_waitcnt lgkmcnt(0)')
    stamp()
    e('global_load_dword v13, v5, s[16:17]')
    e('global_load_dword v14, v6, s[16:17] offset:64')
    if TLBW:
        e(f'v_lshlrev_b32 v15, 21, v3')
        e(f'v_min_u32 v15, 0x1800000, v15')
        e(f'global_load_dword v{T0+4}, v15, s[18:19]')
    e(f'global_load_dwordx4 {vr(HP,4)}, v8, s[28:29]')
    e(f'global_load_dword v{T0+1}, v10, s[30:31]')
    e(f'global_load_ushort v{T0+2}, v12, s[26:27]')
    e(f'global_load_ushort v{T0+3}, v12, s[28:29]')
    for q in range(8):
        e(f'global_load_dwordx4 {vr(WR+4*q,4)}, v9, s[24:25] offset:{256*q}')
    e(f's_mov_b32 s{sTAB}, s18'); e(f's_mov_b32 s{sTAB+1}, s19')
    e(f's_mov_b32 s{sTAB+2}, 25600000'); e(f's_mov_b32 s{sTAB+3}, 0x00020000')
    e(f's_mul_i32 s{sWB}, s{sWID}, {WB}')
    e(f's_add_u32 s{sWB}, s{sWB}, {WREG0}')
    e(f's_mov_b32 s{sABS}, 0x7fff7fff'); e(f's_mov_b32 s{sSGN}, 0x80008000')
    e(f's_mov_b32 s{sM3}, -1'); e(f's_mov_b32 s{sM3+1}, 0x00ffffff')
    e(f's_mov_b32 s{sM4}, 0x0000ffff'); e(f's_mov_b32 s{sM4+1}, 0x0000ffff')
    e(f's_mov_b32 s{sM5}, -1'); e(f's_mov_b32 s{sM5+1}, 0x00001fff')
    e(f's_mov_b32 s{sQ}, 0x11111111'); e(f's_mov_b32 s{sQ+1}, 0x11111111')
    e(f's_movk_i32 s{sT+1}, {RS}')
    e(f's_movk_i32 s{sT+2}, {CS}')
    e('v_lshlrev_b32 v15, 4, v4')
    e(f'v_add_u32 v{AK}, s{sWB}, v15')
    e(f'v_mad_u32_u24 v{AOWN}, v3, s{sT+1}, v{AK}')
    for t in range(3):
        e(f'v_add_u32 v{T0}, {16*t}, v3')
        e(div10(AG+2*t, AG+2*t+1, T0, MX))
        e(f'v_mad_u32_u24 v{AG+2*t}, v{AG+2*t}, s{sT+1}, v{AK}')
        e(f'v_mad_u32_u24 v{AG+2*t+1}, v{AG+2*t+1}, s{sT+1}, v{AK}')
    e('v_lshl_add_u32 v13, v13, 8, v15')
    stamp()
    for s in range(4):
        e(f'buffer_load_dwordx4 {vr(OWN+4*s,4)}, v13, s[{sTAB}:{sTAB+3}], 0 offen offset:{64*s}')
    e('v_lshl_add_u32 v14, v14, 8, v15')
    for s in range(4):
        e(f'buffer_load_dwordx4 {vr(S2+4*s,4)}, v14, s[{sTAB}:{sTAB+3}], 0 offen offset:{64*s}')
    e(f's_add_u32 s{sT+3}, s{sWB}, {GT}')
    e(f'v_lshl_add_u32 v{T0}, v3, 2, s{sT+3}')
    e(f'v_mad_u32_u24 v{GA+0}, v4, s{sT+2}, v{T0}')
    e(f'v_add_u32 v{GA+1}, {20*CS}, v{GA+0}')
    e(f'v_add_u32 v{GA+0}, {16*CS}, v{GA+0}')
    e(f'v_lshrrev_b32 v{MX}, 1, v4')
    e(f'v_mad_u32_u24 v{GA+4}, v{MX}, s{sT+2}, v{T0}')
    e(f'v_add_u32 v{GA+4}, {24*CS}, v{GA+4}')
    e(f'v_add3_u32 v{MX}, v3, v4, 1')
    e(f'v_and_b32 v{DEN}, 15, v{MX}')
    e(f'v_mad_u32_u24 v{GA+2}, v{DEN}, s{sT+2}, v{T0}')
    e(f'v_add_u32 v{MX}, 4, v{MX}')
    e(f'v_and_b32 v{DEN}, 15, v{MX}')
    e(f'v_mad_u32_u24 v{GA+3}, v{DEN}, s{sT+2}, v{T0}')
    e(div10(DEN, NUM, L, MX))
    e(f'v_lshl_add_u32 v{DEN}, v{DEN}, 2, s{sT+3}')
    e(f'v_mad_u32_u24 v{GA+5}, v{NUM}, s{sT+2}, v{DEN}')
    e(f'v_add_u32 v{GA+5}, {16*CS+64}, v{GA+5}')
    e(f'v_mad_u32_u24 v{AGW}, v3, s{sT+2}, v15')
    e(f'v_add_u32 v{AGW}, s{sT+3}, v{AGW}')
    e('v_and_b32 v5, 1, v7')
    e(f'v_mul_u32_u24 v5, {W8}, v5')
    e('v_lshrrev_b32 v6, 1, v7')
    e(f'v_mul_u32_u24 v6, {W16}, v6')
    e('v_add3_u32 v5, v5, v6, v8')
    e('v_lshlrev_b32 v9, 5, v7')
    e('v_lshl_add_u32 v9, v2, 9, v9')
    e('v_lshrrev_b32 v6, 2, v3')
    e(f'v_mul_u32_u24 v6, 288, v6')
    e('v_and_b32 v13, 1, v4')
    e(f'v_mul_u32_u24 v13, {W8}, v13')
    e('v_lshrrev_b32 v14, 1, v4')
    e(f'v_mul_u32_u24 v14, {W16}, v14')
    e('v_add3_u32 v6, v6, v13, v14')
    e('v_and_b32 v13, 3, v0')
    e('v_lshl_add_u32 v6, v13, 3, v6')
    e(f'v_lshrrev_b32 v13, 5, v{L}')
    e('v_lshlrev_b32 v13, 9, v13')
    e('v_lshl_add_u32 v12, v11, 2, v13')
    e(f'v_cmp_lt_u32 vcc, 31, v{L}')
    PV = T0 + 1
    e(f'v_and_b32 v13, s{sSGN}, v{PV}')
    e(f'v_and_b32 v{PV}, s{sABS}, v{PV}')
    e(f'v_pk_max_u16 v14, v{PV}, v{PV} op_sel:[0,1] op_sel_hi:[1,0]')
    e(f'v_cndmask_b32 v{T0+2}, v{T0+2}, v{T0+3}, vcc')
    e(f'v_lshlrev_b32 v{T0+2}, 16, v{T0+2}')
    for q in range(8):
        for i in range(4):
            r = WR + 4*q + i
            c = '0' if i == 0 else f'v{UPV+q}'
            e(f'v_dot2_f32_bf16 v{UPV+q}, v{r}, v{HP+i}, {c}')
        for i in range(4):
            r = WR + 4*q + i
            e(f'v_and_b32 v{WS+4*q+i}, s{sSGN}, v{r}')
            e(f'v_and_b32 v{r}, s{sABS}, v{r}')
        for i in range(4):
            r = WR + 4*q + i
            if q == 0 and i == 0: continue
            if q == 0 and i == 1: e(f'v_pk_max_u16 v{MX}, v{r-1}, v{r}')
            else: e(f'v_pk_max_u16 v{MX}, v{MX}, v{r}')
    stamp()
    e(f'v_pk_max_u16 v{MX}, v{MX}, v{MX} op_sel:[0,1] op_sel_hi:[1,0]')
    red = maxreduce([MX, 14])
    quad = [f'v_add_f32_dpp v{UPV+q}, v{UPV+q}, v{UPV+q} quad_perm:[1,0,3,2] {DPPM}' for q in range(8)]
    quad += [f'v_add_f32_dpp v{UPV+q}, v{UPV+q}, v{UPV+q} quad_perm:[2,3,0,1] {DPPM}' for q in range(8)]
    qi = 0
    e(quad[0:2]); qi = 2
    for k in range(6):
        e(red[2*k:2*k+2]); e(quad[qi:qi+2]); qi += 2
    e(quad[qi:])
    e(f'v_readlane_b32 s{sT}, v{MX}, 63')
    e(f'v_readlane_b32 s{sT+1}, v14, 63')
    e(f's_mov_b64 exec, s[{sQ}:{sQ+1}]')
    e(f'ds_write_b128 v9, {vr(UPV,4)} offset:{UP}')
    e(f'ds_write_b128 v9, {vr(UPV+4,4)} offset:{UP+16}')
    e('s_mov_b64 exec, -1')
    e(f's_bfe_u32 s{sT}, s{sT}, 0x80007')
    e(f's_max_u32 s{sT}, s{sT}, 101')
    e(f's_sub_u32 s{sKW}, 141, s{sT}')
    e(f's_sub_u32 s{sT}, s{sT}, 29')
    e(f's_mul_i32 s{sCW}, s{sT}, 0x800080')
    e(f's_bfe_u32 s{sT+1}, s{sT+1}, 0x80007')
    e(f's_max_u32 s{sT+1}, s{sT+1}, 60')
    e(f's_sub_u32 s{sKO}, s{sT+1}, 134')
    e(f's_sub_u32 s{sT+1}, s{sT+1}, 22')
    e(f's_mul_i32 s{sCP}, s{sT+1}, 0x800080')
    e(f's_sub_u32 s{sT}, 0, s{sKW}')
    for q in range(8):
        for i in range(4):
            r = WR + 4*q + i
            e(f'v_pk_sub_u16 v{r}, v{r}, s{sCW} clamp')
        for i in range(4):
            r = WR + 4*q + i
            e(f'v_lshl_or_b32 v{r}, v{r}, 3, v{WS+4*q+i}')
        e(f'ds_write_b128 v5, {vr(WR+4*q,4)} offset:{WIMG+288*q}')
    e(f'v_mov_b32 v14, s{sKW}')
    e(f'v_mov_b32 v{T0+3}, s{sT}')
    e(f'v_cndmask_b32 v14, v14, v{T0+3}, vcc')
    e(f'v_ldexp_f32 v{T0+2}, v{T0+2}, v14')
    e(f'ds_write_b32 v12, v{T0+2} offset:{BH}')
    e(f'v_pk_sub_u16 v{PV}, v{PV}, s{sCP} clamp')
    e(f'v_lshl_or_b32 v{PV}, v{PV}, 3, v13')
    e(f'v_add_u32 v10, s{sWB}, v10')
    e(f'ds_write_b32 v10, v{PV} offset:{PROW*RS}')
    e(f'v_lshlrev_b32 v9, 3, v{L}')
    e('s_waitcnt lgkmcnt(0)')
    stamp()
    e('s_barrier')
    stamp()
    for w in range(4):
        e(f'ds_read_b64 {vr(UPV+2*w,2)}, v9 offset:{UP+512*w}')
    for mt in range(8):
        e(f'ds_read_b128 {vr(BIAS+4*mt,4)}, v15 offset:{BH+64*mt}')
    def wfrag(mt):
        r = []
        for s in range(4):
            a = (mt*4+s)*4
            r.append(f'ds_read_b64_tr_b16 {ar(a,2)}, v6 offset:{WIMG+2*W16*s+32*mt}')
            r.append(f'ds_read_b64_tr_b16 {ar(a+2,2)}, v6 offset:{WIMG+2*W16*s+1152+32*mt}')
        return r
    wf = [x for mt in range(8) for x in wfrag(mt)]
    hf = [f'ds_read_b128 {vr(HH+4*mt,4)}, v15 offset:{BH+512+64*mt}' for mt in range(8)]
    lds = wf[:8] + hf + wf[8:]
    uadd = [f'v_add_f32 v{UPV}, v{UPV}, v{UPV+2}', f'v_add_f32 v{UPV+1}, v{UPV+1}, v{UPV+3}',
            f'v_add_f32 v{UPV+4}, v{UPV+4}, v{UPV+6}', f'v_add_f32 v{UPV+5}, v{UPV+5}, v{UPV+7}',
            f'v_add_f32 v{UPV}, v{UPV}, v{UPV+4}', f'v_add_f32 v{UPV+1}, v{UPV+1}, v{UPV+5}',
            f'v_max_f32 v14, |v{UPV}|, |v{UPV+1}|']
    e(lds[:4]); li = 4
    for x in uadd:
        e(x); e(lds[li]); li += 1
    ER16 = [OWN + i for i in range(16)] + [S2 + i for i in range(16)]
    pre = []
    for k, r in enumerate(ER16):
        pre.append(f'v_and_b32 v{ES+k}, s{sSGN}, v{r}')
        pre.append(f'v_and_b32 v{r}, s{sABS}, v{r}')
        if k == 1: pre.append(f'v_pk_max_u16 v{MX}, v{ER16[0]}, v{r}')
        elif k > 1: pre.append(f'v_pk_max_u16 v{MX}, v{MX}, v{r}')
    NEARLY = int(opts.get('nearly', 24))
    e(lds[li:li+NEARLY]); li += NEARLY
    rem = lds[li:]
    for k, x in enumerate(pre):
        e(x)
        lo, hi = len(rem)*k//len(pre), len(rem)*(k+1)//len(pre)
        e(rem[lo:hi])
    stamp()
    e(f'v_pk_max_u16 v{MX}, v{MX}, v{MX} op_sel:[0,1] op_sel_hi:[1,0]')
    e(f'v_mov_b32_dpp v{AROT}, v{AOWN} row_ror:15 {DPPM}')
    e(maxreduce([MX, 14]))
    e(f'v_readlane_b32 s{sT}, v{MX}, 63')
    e(f'v_readlane_b32 s{sT+1}, v14, 63')
    e(f's_bfe_u32 s{sT}, s{sT}, 0x80007')
    e(f's_max_u32 s{sT}, s{sT}, 104')
    e(f's_min_u32 s{sT}, s{sT}, 190')
    e(f's_sub_u32 s{sT+2}, s{sT}, 22')
    e(f's_mul_i32 s{sCE}, s{sT+2}, 0x800080')
    def conv(k):
        r = ER16[k]
        return [f'v_pk_sub_u16 v{r}, v{r}, s{sCE} clamp', f'v_lshl_or_b32 v{r}, v{r}, 3, v{ES+k}']
    sal = [f's_sub_u32 s{sK2E}, 134, s{sT}',
           f's_lshl_b32 s{sK2E}, s{sK2E}, 1',
           f's_sub_u32 s{sKO}, s{sKO}, s{sK2E}',
           f's_add_u32 s{sT+2}, s{sK2E}, 1',
           f's_lshl_b32 s{sT+2}, s{sT+2}, 23',
           f's_sub_u32 s{sSMC}, 0x3fb8aa3b, s{sT+2}',
           f's_lshr_b32 s{sT+1}, s{sT+1}, 23',
           f's_max_u32 s{sT+1}, s{sT+1}, 60',
           f's_sub_u32 s{sT+3}, 134, s{sT+1}',
           f's_sub_u32 s{sT+1}, s{sT+1}, 7',
           f's_lshl_b32 s{sCU}, s{sT+1}, 23']
    for s in range(4):
        c = [conv(4*s+i) for i in range(4)]
        e([x[0] for x in c]); e([x[1] for x in c])
        e(f'ds_write_b128 v{AOWN}, {vr(OWN+4*s,4)} offset:{64*s}')
    for s in (3, 2, 1, 0):
        e(f'ds_read_b128 {vr(BF[0]+4*s,4)}, v{AROT} offset:{64*s}')
    e(sal)
    for s in range(4):
        c = [conv(16+4*s+i) for i in range(4)]
        e([x[0] for x in c]); e([x[1] for x in c])
        e(f'ds_write_b128 v{AOWN}, {vr(S2+4*s,4)} offset:{16*RS+64*s}')
    e(f'v_ldexp_f32 v{UPV}, v{UPV}, s{sT+3}')
    e(f'v_ldexp_f32 v{UPV+1}, v{UPV+1}, s{sT+3}')
    e(f'v_cvt_pk_f16_f32 v{UPV}, v{UPV}, v{UPV+1}')
    e(f'ds_write_b32 v10, v{UPV} offset:{UROW*RS}')
    for i in range(4): e(f'v_ldexp_f32 v{BIAS+i}, v{BIAS+i}, s{sK2E}')
    for i in range(4): e(f'v_pk_mul_f16 v{BF[0]+i}, v{BF[0]+i}, v{OWN+i}')
    stamp()

def slot(q, g): return ER + 4*q + g
TILES = [('c', t, slot(2 + (t-1)//4, (t-1) % 4)) for t in range(1, 9)]
TILES += [('b', m, slot(m//4, m % 4)) for m in range(8)]
TILES += [('g', t, slot(5, t)) for t in range(3)]
TILES += [('b', 8, slot(4, 0)), ('b', 9, slot(4, 2))]
NT = len(TILES)

class Q:
    def __init__(self, name): self.name = name; self.ops = []
    def add(self, text, ready, dead, cost=1): self.ops.append([text, ready, dead, cost])

def main_stream():
    mf = []
    base = []
    gram_at = {1: 0, 3: 1, 5: 2, 7: 3}
    gbase = {}
    for T, (kind, par, er) in enumerate(TILES):
        base.append(len(mf))
        b = BF[T & 1]
        for mt in range(8):
            for s in range(4):
                c = vr(BIAS+4*mt, 4) if s == 0 else vr(ACC+4*mt, 4)
                mf.append(f'v_mfma_f32_16x16x32_f16 {vr(ACC+4*mt,4)}, {ar((mt*4+s)*4,4)}, {vr(b+4*s,4)}, {c}')
        if T in gram_at:
            gs = gram_at[T]
            gbase[gs] = len(mf)
            targets = [(OWN, LQ), (S2, LQ+4)] if gs < 2 else [(S2, LQ+8)]
            for bb, d in targets:
                for s in range(4):
                    c = '0' if s == 0 else vr(d, 4)
                    mf.append(f'v_mfma_f32_16x16x32_f16 {vr(d,4)}, {vr(GB+4*s,4)}, {vr(bb+4*s,4)}, {c}')
    NM = len(mf)
    base.append(NM + 1000)
    qs = []
    LAG = int(opts.get('lag', 3))
    RDLAT = int(opts.get('rdlat', 9))
    qf = Q('fma'); qs.append(qf)
    done_tile = {}
    for T, (kind, par, er) in enumerate(TILES):
        e2 = E2 + (T & 1)
        for mt in range(8):
            rdy = base[T] + 4*mt + 3 + LAG
            dead = min(base[T+1] + 4*mt - 1, rdy + 6)
            for r in range(4):
                acc = er if (r & 1) == 0 else e2
                x = ACC + 4*mt + r; h = HH + 4*mt + r
                if mt == 0 and r < 2: qf.add(f'v_mul_f32 v{acc}, |v{x}|, v{h}', rdy, dead)
                else: qf.add(f'v_fma_f32 v{acc}, |v{x}|, v{h}, v{acc}', rdy, dead)
        qf.add(f'v_add_f32 v{er}, v{er}, v{e2}', rdy, dead + 2)
        done_tile[T] = rdy + 4
    qg = Q('gen'); qs.append(qg)
    for i in range(4, 16):
        qg.add(f'v_pk_mul_f16 v{BF[0]+i}, v{BF[0]+i}, v{OWN+i}', -1, i//4 - 2)
    qb = Q('bias'); qs.append(qb)
    for mt in range(1, 8):
        for r in range(4): qb.add(f'v_ldexp_f32 v{BIAS+4*mt+r}, v{BIAS+4*mt+r}, s{sK2E}', -1, 4*mt - 2)
    for T in range(1, NT):
        kind, par, er = TILES[T]
        b = BF[T & 1]
        r0 = base[T-1]
        if T == 1: r0 = 3
        if kind == 'c':
            qg.add(f'v_mov_b32_dpp v{AROT}, v{AOWN} row_ror:{16-par} {DPPM}', r0 - 8, r0)
            for s in (3, 2, 1, 0): qg.add(f'ds_read_b128 {vr(b+4*s,4)}, v{AROT} offset:{64*s}', r0, r0 + 3)
            other = OWN
        elif kind == 'b':
            for s in (3, 2, 1, 0): qg.add(f'ds_read_b128 {vr(b+4*s,4)}, v{AK} offset:{(16+par)*RS+64*s}', r0, r0 + 3)
            other = OWN
        else:
            for s in (3, 2, 1, 0): qg.add(f'ds_read_b128 {vr(STG+4*s,4)}, v{AG+2*par} offset:{16*RS+64*s}', r0, r0 + 3)
            for s in (3, 2, 1, 0): qg.add(f'ds_read_b128 {vr(b+4*s,4)}, v{AG+2*par+1} offset:{16*RS+64*s}', r0, r0 + 5)
            other = STG
        r1 = r0 + RDLAT + (3 if kind == 'g' else 1)
        for i in range(16):
            span = base[T] - 2 - r1
            qg.add(f'v_pk_mul_f16 v{b+i}, v{b+i}, v{other+i}', r1, r1 + span * (i + 1) // 16, 2 if i == 0 else 1)
    qr = Q('gram'); qs.append(qr)
    prev_end = 4
    for gs in range(4):
        row = UROW if gs % 2 == 0 else PROW
        other = OWN if gs < 2 else S2
        gb = gbase[gs]
        r0 = prev_end
        for s in (3, 2, 1, 0): qr.add(f'ds_read_b128 {vr(GB+4*s,4)}, v{AK} offset:{row*RS+64*s}', r0, gb - 30)
        for i in range(16):
            qr.add(f'v_pk_mul_f16 v{GB+i}, v{GB+i}, v{other+i}', r0 + RDLAT + 3, gb - 2, 2 if i == 0 else 1)
        n = 8 if gs < 2 else 4
        tab = GTSZ * (gs % 2)
        if gs < 2:
            qr.add(f'ds_write_b128 v{AGW}, {vr(LQ,4)} offset:{tab}', gb + 3 + LAG, gb + 20)
            qr.add(f'ds_write_b128 v{AGW}, {vr(LQ+4,4)} offset:{tab+16*CS}', gb + 7 + LAG, gb + 20)
        else:
            qr.add(f'ds_write_b128 v{AGW}, {vr(LQ+8,4)} offset:{tab+16*CS+64}', gb + 3 + LAG, gb + 20)
        prev_end = gb + n
    for q in range(6):
        qr.add(f'ds_read2st64_b32 {vr(LQ+2*q,2)}, v{GA+q} offset0:0 offset1:{GTSZ//256}', prev_end + 24, prev_end + 80)
    gath = prev_end + 60
    qo = Q('red'); qs.append(qo)
    tile_of = {er: T for T, (_, _, er) in enumerate(TILES)}
    first = True
    for q in (2, 3, 0, 1, 5):
        t = [slot(q, g) for g in range(4)]
        rdy = max(done_tile[tile_of[x]] for x in t if x in tile_of) + 4
        rdy = max(rdy, gath)
        dead = min(rdy + 60, NM - 8)
        seq = [f'v_permlane32_swap_b32 v{t[0]}, v{t[2]}', f'v_permlane32_swap_b32 v{t[1]}, v{t[3]}',
               f'v_add_f32 v{t[0]}, v{t[0]}, v{t[2]}', f'v_add_f32 v{t[1]}, v{t[1]}, v{t[3]}', None,
               f'v_permlane16_swap_b32 v{t[0]}, v{t[1]}', f'v_add_f32 v{t[0]}, v{t[0]}, v{t[1]}',
               f'v_fma_f32 v{t[0]}, v{LQ+2*q}, s{sCU}, v{t[0]}']
        if q == 3: seq.append(f'v_cndmask_b32 v{t[0]}, v{T0}, v{t[0]}, s[{sM3}:{sM3+1}]')
        if q == 5: seq.append(f'v_cndmask_b32 v{t[0]}, v{T0}, v{t[0]}, s[{sM5}:{sM5+1}]')
        if first:
            seq = [f'v_mov_b32 v{T0}, 0xff800000'] + seq + [f'v_mov_b32 v{MX}, v{t[0]}']; first = False
        else: seq.append(f'v_max_f32 v{MX}, v{MX}, v{t[0]}')
        for x in seq:
            if x is None: rdy += 2; continue
            qo.add(x, rdy, dead); rdy += 1
    CAP = int(opts.get('cap', 2))
    over = 0
    def emit_gap(k, cap):
        nonlocal over
        used = 0
        while True:
            cand = [q for q in qs if q.ops and q.ops[0][1] <= k]
            if not cand: break
            q = min(cand, key=lambda q: q.ops[0][2])
            op = q.ops[0]
            if used + op[3] > cap and op[2] > k: break
            q.ops.pop(0); e(op[0]); used += op[3]
        if used > cap: over += used - cap
    emit_gap(-1, 0)
    for k in range(NM):
        e(mf[k])
        emit_gap(k, CAP)
    stamp()
    emit_gap(10**6, 10**6)
    print('mfma', NM, 'overfull slots', over)

def tail():
    a, b = slot(4, 0), slot(4, 2)
    t = slot(4, 1)
    e(f'v_permlane32_swap_b32 v{a}, v{b}')
    e(f'v_add_f32 v{a}, v{a}, v{b}')
    e(f'v_mov_b32 v{t}, v{a}')
    e(f'v_permlane16_swap_b32 v{a}, v{t}')
    e(f'v_add_f32 v{a}, v{a}, v{t}')
    e(f'v_fma_f32 v{a}, v{LQ+8}, s{sCU}, v{a}')
    e(f'v_cndmask_b32 v{a}, v{T0}, v{a}, s[{sM4}:{sM4+1}]')
    e(f'v_max_f32 v{MX}, v{MX}, v{a}')
    e(maxreduce([MX], 'v_max_f32'))
    e(f'v_readlane_b32 s{sMX}, v{MX}, 63')
    R = [slot(q, 0) for q in range(6)]
    for r in R: e(f'v_subrev_f32 v{r}, s{sMX}, v{r}')
    for r in R: e(f'v_mul_f32 v{r}, s{sSMC}, v{r}')
    for r in R: e(f'v_exp_f32 v{r}, v{r}')
    e(f'v_add_f32 v{DEN}, v{R[0]}, v{R[1]}')
    e(f'v_mul_f32 v{NUM}, v{R[0]}, v{LQ+1}')
    for q in range(1, 6):
        if q > 1: e(f'v_add_f32 v{DEN}, v{DEN}, v{R[q]}')
        e(f'v_fmac_f32 v{NUM}, v{R[q]}, v{LQ+2*q+1}')
    e(maxreduce([DEN, NUM], 'v_add_f32'))
    e(f'v_rcp_f32 v{DEN}, v{DEN}')
    e(f's_lshl_b32 s{sT}, s{sB}, 1')
    e(f'v_mov_b32 v2, s{sT}')
    e(f'v_mul_f32 v{NUM}, v{NUM}, v{DEN}')
    e(f'v_ldexp_f32 v{NUM}, v{NUM}, s{sKO}')
    e(f's_mov_b32 exec_lo, 0')
    e(f's_mov_b32 exec_hi, 0x80000000')
    e(f'v_cvt_pk_bf16_f32 v{NUM}, v{NUM}, v{NUM}')
    e(f'global_store_short v2, v{NUM}, s[32:33]')
    if TIMING:
        e('s_waitcnt vmcnt(0)')
        stamp()
        e('s_memrealtime s[100:101]')
        e('s_load_dwordx2 s[56:57], s[0:1], 80')
        e('s_waitcnt lgkmcnt(0)')
        e(f's_lshl_b32 s{sT}, s{sB}, 6')
        e(f'v_mov_b32 v2, s{sT}')
        e('v_mov_b32 v3, s98'); e('global_store_dword v2, v3, s[56:57]')
        e('v_mov_b32 v3, s100'); e('global_store_dword v2, v3, s[56:57] offset:4')
        for i in range(stampn[0]):
            e(f'v_mov_b32 v3, s{60+2*i}'); e(f'global_store_dword v2, v3, s[56:57] offset:{8+4*i}')
    if DUP == 'loop':
        e('s_mov_b64 exec, -1'); e('s_mov_b32 s90, 1'); e('s_waitcnt vmcnt(0) lgkmcnt(0)'); e('s_branch L_stream')
    if DUP == 'copy':
        e('s_mov_b64 exec, -1'); e('s_waitcnt vmcnt(0) lgkmcnt(0)')
        main_stream()
    e('L_end:')

def dump(regs, tag):
    e('s_waitcnt vmcnt(0) lgkmcnt(0)')
    e('s_nop 7'); e('s_nop 7')
    e('s_load_dwordx2 s[56:57], s[0:1], 80')
    e('s_waitcnt lgkmcnt(0)')
    e(f's_lshl_b32 s58, s{sB}, 16')
    e(f'v_lshl_add_u32 v2, v{L}, 2, s58')
    for k, r in enumerate(regs):
        if r.startswith('a'):
            e(f'v_accvgpr_read_b32 v3, {r}'); r = 'v3'
        elif r.startswith('s'):
            e(f'v_mov_b32 v3, {r}'); r = 'v3'
        e(f'global_store_dword v2, {r}, s[56:57]')
        e('s_waitcnt vmcnt(0)')
        e('v_add_u32 v2, 256, v2')
    e('s_endpgm')

prologue()
if DEBUG == 'pro':
    dump([f'v{i}' for i in range(16, 96)] + [f'v{S2+i}' for i in range(16)] + [f'v{BF[0]+i}' for i in range(16)] +
         [f's{i}' for i in range(8, 16)] + [f'a{i}' for i in range(128)], 'pro')
DUP = opts.get('dup', '')
if DUP == 'loop':
    e('s_mov_b32 s90, 0')
    e('L_stream:')
main_stream()
if DUP == 'loop':
    e('s_cmp_eq_u32 s90, 1'); e('s_cbranch_scc1 L_end')
if DEBUG == 'end':
    dump([f'v{ER+i}' for i in range(24)] + [f'v{LQ+i}' for i in range(12)] + [f's{i}' for i in range(8, 16)] + [f'v{MX}'], 'end')
tail()
body = A.finalize(verbose=True)
if int(opts.get('v', 0)):
    for x in A.nops: print('nop', x)
    for x in A.waits: print('wait', x)

asm = HDR + f'''; @launch grid=(256,1,1) block=(256,1,1) lds={LDS_TOTAL}
.amdgcn_target "amdgcn-amd-amdhsa--gfx950"
.text
.globl standalone__factorization_afm__recsys_kernel
.p2align 8
.type standalone__factorization_afm__recsys_kernel,@function
standalone__factorization_afm__recsys_kernel:
''' + body + '''
s_endpgm
.section .rodata,"a"
.p2align 6
.amdhsa_kernel standalone__factorization_afm__recsys_kernel
  .amdhsa_next_free_vgpr 384
  .amdhsa_next_free_sgpr 102
  .amdhsa_accum_offset 256
  .amdhsa_group_segment_fixed_size 0
  .amdhsa_kernarg_size 88
  .amdhsa_user_sgpr_count 2
  .amdhsa_user_sgpr_kernarg_segment_ptr 1
  .amdhsa_system_sgpr_workgroup_id_x 1
.end_amdhsa_kernel
'''
open(OUT, 'w').write(asm)
```

```python
import sys, os
sys.path.insert(0, os.path.dirname(os.path.abspath(__file__)))
from asmlib import *

OUT = sys.argv[1] if len(sys.argv) > 1 else 'standalone__factorization_afm__recsys.s'
opts = dict(kv.split('=') for kv in sys.argv[2:])
TIMING = int(opts.get('time', 0))
TLBW = int(opts.get('tlbw', 0))
CPF = int(opts.get('cpf', 7))
CPFPOS = int(opts.get('cpfpos', 0))
NEARLY = int(opts.get('nearly', 56))
ACC1 = int(opts.get('acc1', 1))
FDL = int(opts.get('fdl', 4))
STREAMADDR = int(opts.get('sa', 0))
S2POS = int(opts.get('s2pos', 2))
NR = eval(opts.get('nr', '[80,0,0,0,0]'))
WCHK = int(opts.get('wchk', 24))
DSPRI = int(opts.get('dspri', 40))
IBAR = int(opts.get('ibar', 1))
CEARLY = int(opts.get('cearly', 1))
LAG = int(opts.get('lag', 3))
RDLAT = int(opts.get('rdlat', 9))

HDR = open('standalone__factorization_afm__recsys.s.ref').read().split('; Override launch')[0]

W8, W16 = 2432, 4736
WIMG = 0
BH = 8 * W16
UP = BH + 1024
FL = UP + 512
WREG0 = UP + 2048
RS = 288
UROW, PROW = 32, 33
GT = 34 * RS
CS = 144
GTSZ = 32 * CS
WB = GT + 2 * GTSZ
LDS_TOTAL = WREG0 + 4 * WB
KE0 = 5

L = 1
vW, aFW, vG = 2, 3, 4
aWW, aTR, aUW, aBW = 5, 6, 7, 8
vKB = 9
aUR, aRW = 10, 11
vB, vH = 12, 13
v16C, v16G = 14, 15
BIAS, HH, OWN, ACC = 16, 48, 80, 96
BF = [128, 144]
GB = 160
ER = 176
E2 = 200
AROT0 = 201
AS2, AEW = 202, 203
S2 = 204
STG = S2
LQ = 220
GA = 232
AGW = 238
AG = 239
AK, AOWN, AROT = 245, 246, 247
MX, DEN, NUM = 248, 249, 250
NINF = 251
PV, PS, PM, UM = 252, 253, 254, 255
WR = 16
WC = 48
LT = 96
UPV = 112
XT = 120
TB = 128
U2 = 192
HP = 220
ERAW = 144
EC = 172
IDX = 204
sWID, sB, sWB = 3, 4, 5
sT = 6
sCP, sKO, sCU = 10, 11, 12
sMX, sM1 = 13, 14
sU = 34
sM3, sM4, sM5, sQ = 36, 38, 40, 42
sABS, sSGN, sHIM, sKW, sK23, sK7, sHI, sLO, sWBAD, sWTHR, s2KE, sSMC = range(44, 56)
CONSTS = [0xffffffff, 0x00ffffff, 0x0000ffff, 0x0000ffff, 0xffffffff, 0x00001fff, 0x11111111, 0x11111111,
          0x7fff7fff, 0x80008000, 0xffff0000, 0, KE0 << 23, KE0 << 7, 0x43800000, 0x41000000, 0x40004000, 1,
          2*KE0, 0x3fb8aa3b - ((2*KE0+1) << 23)]
sTAB = 56
sCMP = 92
sPC = 96

def lane_table():
    T = [[[0]*4 for _ in range(64)] for _ in range(4)]
    def xy(n):
        x = n % 10; return x, (x + 1 + n // 10) % 10
    for l in range(64):
        c, g, i, cq = l & 15, l >> 4, l >> 2, l & 3
        ak = 16*g
        v = dict(
            aWW=288*g + 16*c, aUW=UP + 2*l, aBW=512*(l >> 5) + 4*(l & 31), vKB=(2*KE0 if l < 32 else 0),
            aTR=288*(c >> 2) + W8*(g & 1) + W16*(g >> 1) + 8*(c & 3), v16G=16*g,
            AEW=g*RS + 16*c, AOWN=c*RS + ak, AROT0=((c+1) % 16)*RS + ak, AK=ak, AS2=min(c, 9)*RS + ak,
            aUR=UP + 128*((l >> 1) & 3) + 64*(l & 1) + 8*((((l >> 3) & 1) << 1) | ((l >> 4) & 1)) + 4*(l >> 5), aRW=4*l, AGW=GT + c*CS + 16*g)
        ga = [GT + (16+g)*CS + 4*c, GT + (20+g)*CS + 4*c, GT + ((c+g+1) % 16)*CS + 4*c, GT + ((c+g+5) % 16)*CS + 4*c,
              GT + (24+(g >> 1))*CS + 4*c, GT + (16+xy(l)[1])*CS + 4*(16+xy(l)[0])]
        ag = []
        for t in range(3):
            x, y = xy(16*t + c); ag += [x*RS + ak, y*RS + ak]
        pk = lambda lo, hi: lo | (hi << 16)
        T[0][l] = [pk(v['aWW'], v['aUW']), pk(v['aBW'], v['vKB']), pk(v['aTR'], v['v16G']), pk(v['AEW'], v['AOWN'])]
        T[1][l] = [pk(v['AROT0'], v['AK']), pk(v['AS2'], v['aUR']), 0, 0]
        T[2][l] = [pk(ga[k], ag[k]) for k in range(4)]
        T[3][l] = [pk(ga[4], ag[4]), pk(ga[5], ag[5]), pk(v['AGW'], v['aRW']), 0]
    return T

def unp(dst, src, hi, sbase=None):
    if sbase is None:
        return f'v_lshrrev_b32 v{dst}, 16, v{src}' if hi else f'v_and_b32 v{dst}, 0xffff, v{src}'
    return f'v_add_u32_sdwa v{dst}, v{src}, s{sbase} dst_sel:DWORD dst_unused:UNUSED_PAD src0_sel:WORD_{hi} src1_sel:DWORD'

A = Asm()
e = A.e
stampn = [0]
STS = opts.get('sts', '')
def xst(name):
    if name in STS.split(','): stamp(True)
def stamp(force=False):
    if STS and not force and stampn[0] > 0: return
    if TIMING:
        e(f's_mem{"real" if TIMING == 2 else ""}time s[{60+2*stampn[0]}:{61+2*stampn[0]}]')
        stampn[0] += 1

DPPM = 'row_mask:0xf bank_mask:0xf'
def reduce_(regs, op='v_max_u32', b15=True):
    r = []
    for k in (8, 4, 2, 1):
        for v in regs: r.append(f'{op}_dpp v{v}, v{v}, v{v} row_ror:{k} {DPPM}')
    if b15:
        for v in regs: r.append(f'{op}_dpp v{v}, v{v}, v{v} row_bcast:15 row_mask:0xa bank_mask:0xf')
    for v in regs: r.append(f'{op}_dpp v{v}, v{v}, v{v} row_bcast:31 row_mask:0xc bank_mask:0xf')
    return r

def div10(dst_x, dst_y, n, t):
    return [f'v_mul_u32_u24 v{t}, 205, v{n}',
            f'v_lshrrev_b32 v{t}, 11, v{t}',
            f'v_mul_u32_u24 v{dst_x}, 10, v{t}',
            f'v_sub_u32 v{dst_x}, v{n}, v{dst_x}',
            f'v_add3_u32 v{dst_y}, v{dst_x}, v{t}, 1',
            f'v_subrev_u32 v{t}, 10, v{dst_y}',
            f'v_min_u32 v{dst_y}, v{dst_y}, v{t}']

def wfrag(mt):
    r = []
    for s in range(4):
        a = (mt*4+s)*4
        r.append(f'ds_read_b64_tr_b16 {ar(a,2)}, v{aTR} offset:{WIMG+2*W16*s+32*mt}')
        r.append(f'ds_read_b64_tr_b16 {ar(a+2,2)}, v{aTR} offset:{WIMG+2*W16*s+1152+32*mt}')
    return r

def tlbw(X):
    e(f'v_lshlrev_b32 v{X}, 21, v{vC}')
    e(f'v_min_u32 v{X}, 0x1800000, v{X}')
    e(f's_mov_b64 exec, 0x1fff')
    e(f'global_load_dword v{NUM}, v{X}, s[18:19]')
    e(f's_mov_b64 exec, -1')

def s2loads():
    for q in range(4, 7):
        e(f'buffer_load_dwordx4 {vr(ERAW+4*q,4)}, v{IDX+q}, s[{sTAB}:{sTAB+3}], 0 offen')

SLOT0 = [0, 4, 8, 12, 16, 19, 22]
def econv(q, lt, ec):
    r = []
    for i in range(4):
        x = ERAW + 4*q + i
        r.append(f'v_lshl_add_u32 v{lt+2*i}, v{x}, 16, s{sK23}')
        r.append(f'v_add_u32_sdwa v{lt+2*i+1}, v{x}, s{sK7} dst_sel:WORD_1 dst_unused:UNUSED_PAD src0_sel:WORD_1 src1_sel:DWORD')
    for i in range(4):
        r.append(f'v_cvt_pkrtz_f16_f32 v{ec+i}, v{lt+2*i}, v{lt+2*i+1}')
        m = MX if i & 1 == 0 else DEN
        if q == 0 and i < 2: r.append(f'v_max_f32 v{m}, |v{lt+2*i}|, |v{lt+2*i+1}|')
        else: r.append(f'v_max3_f32 v{m}, v{m}, |v{lt+2*i}|, |v{lt+2*i+1}|')
    r.append(f'ds_write_b128 v{AEW}, {vr(ec,4)} offset:{SLOT0[q]*RS}')
    return r

def prologue():
    X = XT
    e('s_cmp_ge_u32 s2, 256')
    e('s_cbranch_scc1 L_end')
    if TIMING: e('s_memrealtime s[98:99]')
    stamp()
    e('s_load_dwordx16 s[16:31], s[0:1], 0')
    e('s_load_dwordx2 s[32:33], s[0:1], 64')
    e(f's_getpc_b64 s[{sPC}:{sPC+1}]')
    e('L_pc:')
    e(f'v_and_b32 v{L}, 63, v0')
    e(f'v_lshlrev_b32 v{X}, 4, v{L}')
    e(f'v_add_u32 v{X}, L_tab-L_pc, v{X}')
    e(f'global_load_dwordx4 {vr(TB,4)}, v{X}, s[{sPC}:{sPC+1}]')
    e(f's_bfe_u32 s{sT+1}, s2, 0x20003')
    e(f's_lshl_b32 s{sT+1}, s{sT+1}, 13')
    e(f'v_lshl_add_u32 v{E2}, v0, 5, s{sT+1}')
    e(f'v_lshrrev_b32 v{vW}, 6, v0')
    e(f'v_min_u32 v{E2}, L_end-L_pc, v{E2}')
    e(f'v_readfirstlane_b32 s{sWID}, v{vW}')
    e(f'global_load_dword v{NINF}, v{E2}, s[{sPC}:{sPC+1}]')
    e(f'global_load_dwordx2 {vr(TB+4,2)}, v{X}, s[{sPC}:{sPC+1}] offset:1024')
    e(f'global_load_dwordx4 {vr(GA,4)}, v{X}, s[{sPC}:{sPC+1}] offset:2048')
    e(f'global_load_dwordx3 {vr(GA+4,3)}, v{X}, s[{sPC}:{sPC+1}] offset:3072')
    e(f'v_bfe_u32 v{vG}, v0, 4, 2')
    e(f's_lshl2_add_u32 s{sB}, s2, s{sWID}')
    e(f's_mul_i32 s{sT}, s{sB}, 104')
    e(f's_add_u32 s{sT+1}, s{sT}, 76')
    e(f'v_lshlrev_b32 v{X+3}, 4, v0')
    e(f'v_and_b32 v{v16C}, 0xf0, v{X+3}')
    e(f'v_mad_u32_u24 v{X+1}, v{vG}, 28, s{sT}')
    e(f'v_and_b32 v{X+6}, 31, v0')
    e(f'v_lshlrev_b32 v{X+5}, 6, v{vW}')
    e(f'v_min_u32 v{X+2}, s{sT+1}, v{X+1}')
    e(f'v_lshl_or_b32 v{X+6}, v{X+6}, 1, v{X+5}')
    e(f'v_lshlrev_b32 v{X+5}, 2, v{L}')
    for j in range(4): e(f'v_add_u32 v{UPV+j}, {4096*(2*j+1)}, v{X+3}')
    xst('a')
    e('s_waitcnt lgkmcnt(0)')
    stamp(); xst('b')
    e(f'global_load_dwordx4 {vr(IDX,4)}, v{X+1}, s[16:17]')
    e(f'global_load_dwordx3 {vr(IDX+4,3)}, v{X+2}, s[16:17] offset:16')
    if IBAR: e('s_barrier')
    xst('c')
    e(f'global_load_dwordx4 {vr(HP,4)}, v{v16C}, s[28:29]')
    e(f'global_load_ushort v{vB}, v{X+6}, s[26:27]')
    e(f'global_load_ushort v{vH}, v{X+6}, s[28:29]')
    e(f'global_load_dword v{PV}, v{X+5}, s[30:31]')
    for q in range(8):
        e(f'global_load_dwordx4 {vr(WR+4*q,4)}, v{UPV+q//2}, s[24:25] offset:{-4096 if q % 2 == 0 else 0}')
    xst('d')
    e(f's_add_u32 s94, s{sPC}, L_ctab-L_pc')
    e(f's_addc_u32 s95, s{sPC+1}, 0')
    e(f's_load_dwordx16 s[36:51], s[94:95], 0')
    e(f's_load_dwordx4 s[52:55], s[94:95], 64')
    e(f's_mov_b32 s{sTAB}, s18'); e(f's_mov_b32 s{sTAB+1}, s19')
    e(f's_mov_b32 s{sTAB+2}, 25600000'); e(f's_mov_b32 s{sTAB+3}, 0x00020000')
    e(f's_mul_i32 s{sWB}, s{sWID}, {WB}')
    e(f's_lshr_b32 s{sT+1}, s{sWID}, 1')
    e(f's_mul_i32 s{sT}, s{sWID}, 1152')
    e(f's_lshl_b32 s{sT+1}, s{sT+1}, 7')
    e(f's_add_u32 s{sT}, s{sT}, s{sT+1}')
    e(f's_lshl_b32 s{sT+2}, s{sWID}, 7')
    e(f's_add_u32 s{sWB}, s{sWB}, {WREG0}')
    e(f'v_lshlrev_b32 v{X+7}, 4, v{L}')
    e(f'v_lshl_add_u32 v{aFW}, v{vW}, 2, v{X+7}')
    xst('e')
    upk = [unp(aWW, TB, 0, sT), unp(aUW, TB, 1, sT+2), unp(aBW, TB+1, 0, sT+2), unp(vKB, TB+1, 1),
           unp(aTR, TB+2, 0), unp(v16G, TB+2, 1), unp(AEW, TB+3, 0, sWB), unp(AOWN, TB+3, 1, sWB),
           unp(AROT0, TB+4, 0, sWB), unp(AK, TB+4, 1, sWB), unp(AS2, TB+5, 0, sWB), unp(aUR, TB+5, 1)]
    UPK = int(opts.get('upk', 12))
    e(upk[:1]); xst('f'); e(upk[1:UPK]); xst('g')
    for q in range(4): e(f'v_lshl_add_u32 v{IDX+q}, v{IDX+q}, 8, v{v16C}')
    stamp(); xst('h')
    for q in range(4):
        e(f'buffer_load_dwordx4 {vr(ERAW+4*q,4)}, v{IDX+q}, s[{sTAB}:{sTAB+3}], 0 offen')
    for q in range(4, 7): e(f'v_lshl_add_u32 v{IDX+q}, v{IDX+q}, 8, v{v16C}')
    if S2POS == 0: s2loads()
    e(upk[UPK:])
    xst('i')
    e('s_waitcnt lgkmcnt(0)')
    xst('j')
    e('L_wconv:')
    for q in range(8):
        lt = LT + 8*(q & 1)
        for i in range(4):
            r = WR + 4*q + i
            e(f'v_lshlrev_b32 v{lt+2*i}, 16, v{r}')
            if i == 0 and q == 0: stamp()
            if i == 0: xst(f'w{q}')
            e(f'v_and_b32 v{lt+2*i+1}, s{sHIM}, v{r}')
            c = '0' if i == 0 else f'v{UPV+q}'
            e(f'v_dot2_f32_bf16 v{UPV+q}, v{r}, v{HP+i}, {c}')
        for i in range(4):
            e(f'v_cvt_pkrtz_f16_f32 v{WC+4*q+i}, v{lt+2*i}, v{lt+2*i+1}')
        dp = []
        def dpp(dst, src, ctl, bank): return f'v_add_f32_dpp v{UPV+dst}, v{UPV+src}, v{UPV+src} {ctl} row_mask:0xf bank_mask:{bank:#x}'
        if q % 2 == 1: dp = [dpp(q-1, q-1, 'row_ror:8', 3)]
        if q % 2 == 0 and q > 0: dp = [dpp(q-2, q-1, 'row_ror:8', 12)]
        if q == 3: dp.append(dpp(0, 0, 'row_half_mirror', 5))
        if q == 5: dp.append(dpp(0, 2, 'row_half_mirror', 10))
        if q == 6: dp.append(dpp(0, 0, 'quad_perm:[1,0,3,2]', 15))
        if q == 7: dp = [dpp(4, 4, 'row_half_mirror', 5)] + dp
        if q == 0: e(f'v_or_b32 v{MX}, v{WC}, v{WC+1}')
        else: e(f'v_or3_b32 v{MX}, v{MX}, v{WC+4*q}, v{WC+4*q+1}')
        e(dp[:1])
        e(f'v_or3_b32 v{MX}, v{MX}, v{WC+4*q+2}, v{WC+4*q+3}')
        e(dp[1:])
        e(f'ds_write_b128 v{aWW}, {vr(WC+4*q,4)} offset:{WIMG+W16*q}')
    stamp()
    e(f'v_cmp_lt_u32 vcc, 31, v{L}')
    e(dpp(6, 7, 'row_ror:8', 12))
    e(dpp(0, 0, 'quad_perm:[2,3,0,1]', 15))
    e(f'v_cndmask_b32 v{X}, v{vB}, v{vH}, vcc')
    e(dpp(4, 6, 'row_half_mirror', 10))
    e(f'v_lshlrev_b32 v{X}, 16, v{X}')
    e(f'v_ldexp_f32 v{X}, v{X}, v{vKB}')
    e(dpp(4, 4, 'quad_perm:[1,0,3,2]', 15))
    e(f'ds_write_b32 v{aFW}, v{MX} offset:{FL}')
    e(f'ds_write_b32 v{aBW}, v{X} offset:{BH}')
    e(dpp(1, 4, 'quad_perm:[2,3,0,1]', 15))
    e(f's_mov_b64 exec, s[{sQ}:{sQ+1}]')
    e(f'ds_write_b64 v{aUW}, {vr(UPV,2)}')
    e('s_mov_b64 exec, -1')
    if S2POS == 1: s2loads()
    e('s_waitcnt lgkmcnt(0)')
    stamp()
    e('s_barrier')
    stamp()
    bf = [f'ds_read_b128 {vr(BIAS+4*mt,4)}, v{v16G} offset:{BH+64*mt}' for mt in range(8)]
    hf = [f'ds_read_b128 {vr(HH+4*mt,4)}, v{v16G} offset:{BH+512+64*mt}' for mt in range(8)]
    wf = [x for mt in range(8) for x in wfrag(mt)]
    lds = wf[:WCHK] + bf + hf[:WCHK//8]
    for mt in range(WCHK//8, 8): lds += wfrag(mt) + [hf[mt]]
    assert sum(NR) == len(lds) and NR[0] >= WCHK + 8
    e(f'ds_read_b128 {vr(UPV,4)}, v{X+7} offset:{FL}')
    e(lds[:WCHK])
    e(f'v_or3_b32 v{UPV}, v{UPV}, v{UPV+1}, v{UPV+2}')
    e(f'v_or_b32 v{UPV}, v{UPV}, v{UPV+3}')
    e(f'v_and_b32 v{X+1}, s{sWBAD}, v{UPV}')
    e(f'v_and_b32 v{X+2}, 0x20002000, v{UPV}')
    e(f'v_cmp_ne_u32 vcc, 0, v{X+1}')
    e(f'v_cmp_ge_u32 s[{sCMP}:{sCMP+1}], v{X+2}, s{sWTHR}')
    e('s_cbranch_vccnz L_wfix')
    e(f's_cmp_eq_u64 s[{sCMP}:{sCMP+1}], 0')
    e('s_cbranch_scc1 L_wfix')
    if S2POS == 2: s2loads()
    e(lds[WCHK:NR[0]])
    rem = lds[NR[0]:]
    if S2POS == 3: s2loads()
    stamp()
    e('L_econv:')
    for q in range(4):
        cv = econv(q, LT + 8*(q & 1), EC + 4*q)
        e(cv[0])
        if q == 0: stamp()
        e(cv[1:])
        if q == 3:
            for s in range(4):
                e(f'ds_read_b128 {vr(OWN+4*s,4)}, v{AOWN} offset:{64*s}')
                e(f'ds_read_b128 {vr(BF[0]+4*s,4)}, v{AROT0} offset:{64*s}')
            stamp()
        e(rem[:NR[q+1]]); rem = rem[NR[q+1]:]
    for i in range(4): e(f'v_pk_mul_f16 v{BF[0]+i}, v{BF[0]+i}, v{OWN+i}')
    stamp()

def rescale(regs, sk, t0, t1):
    for r in regs:
        e(f'v_lshlrev_b32 v{t0}, 16, v{r}')
        e(f'v_and_b32 v{t1}, s{sHIM}, v{r}')
        e(f'v_ldexp_f32 v{t0}, v{t0}, s{sk}')
        e(f'v_ldexp_f32 v{t1}, v{t1}, s{sk}')
        e(f'v_perm_b32 v{r}, v{t1}, v{t0}, s{sT+2}')

def maxexp(regs, t0, t1, xchg=False):
    e(f'v_mov_b32 v{t0}, 0')
    for r in regs:
        e(f'v_and_b32 v{t1}, s{sABS}, v{r}')
        e(f'v_pk_max_u16 v{t0}, v{t0}, v{t1}')
    if xchg:
        e('s_barrier')
        e(f'ds_write_b32 v{aFW}, v{t0} offset:{FL}')
        e('s_waitcnt lgkmcnt(0)')
        e('s_barrier')
        e(f'ds_read_b128 {vr(UPV,4)}, v{XT+7} offset:{FL}')
        for k in range(4): e(f'v_pk_max_u16 v{t0}, v{t0}, v{UPV+k}')
        e('s_barrier')
    e(f'v_pk_max_u16 v{t0}, v{t0}, v{t0} op_sel:[0,1] op_sel_hi:[1,0]')
    e(reduce_([t0]))
    e(f'v_readlane_b32 s{sT}, v{t0}, 63')
    e(f's_bfe_u32 s{sT}, s{sT}, 0x80007')

def fixups():
    t0, t1 = XT + 1, XT + 2
    e('L_wfix:')
    e('s_waitcnt lgkmcnt(0)')
    e('s_nop 7')
    e(f's_mov_b32 s{sT+2}, 0x07060302')
    maxexp(range(WR, WR+32), t0, t1, True)
    e(f's_max_u32 s{sT}, s{sT}, 87')
    e(f's_sub_u32 s{sKW}, 127, s{sT}')
    e(f's_sub_u32 s{sT+1}, 0, s{sKW}')
    rescale(range(WR, WR+32), sKW, t0, t1)
    rescale(range(HP, HP+4), sT+1, t0, t1)
    e(f's_add_u32 s{sT}, s{sKW}, {2*KE0}')
    e(f'v_cmp_lt_u32 vcc, 31, v{L}')
    e(f'v_mov_b32 v{t0}, s{sT}')
    e(f'v_mov_b32 v{t1}, s{sT+1}')
    e(f'v_cndmask_b32 v{vKB}, v{t0}, v{t1}, vcc')
    e(f's_mov_b32 s{sWBAD}, 0'); e(f's_mov_b32 s{sWTHR}, 0')
    e('s_nop 7')
    e('s_branch L_wconv')
    e('L_efix:')
    e('s_waitcnt vmcnt(0) lgkmcnt(0)')
    e('s_nop 15')
    e(f's_mul_i32 s{sT}, s{sB}, 104')
    e(f'v_mul_u32_u24 v{t0}, 28, v{vG}')
    e(f'v_min_u32 v{t1}, 76, v{t0}')
    e(f'v_add_u32 v{t0}, s{sT}, v{t0}')
    e(f'v_add_u32 v{t1}, s{sT}, v{t1}')
    e(f'global_load_dwordx4 {vr(IDX,4)}, v{t0}, s[16:17]')
    e(f'global_load_dwordx3 {vr(IDX+4,3)}, v{t1}, s[16:17] offset:16')
    for q in range(7): e(f'v_lshl_add_u32 v{IDX+q}, v{IDX+q}, 8, v{v16C}')
    for q in range(7):
        e(f'buffer_load_dwordx4 {vr(ERAW+4*q,4)}, v{IDX+q}, s[{sTAB}:{sTAB+3}], 0 offen')
    e('s_waitcnt vmcnt(0)')
    e(f's_mov_b32 s{sT+2}, 0x07060302')
    maxexp(range(ERAW, ERAW+28), t0, t1)
    e(f's_max_u32 s{sT}, s{sT}, 104')
    e(f's_min_u32 s{sT}, s{sT}, 190')
    e(f's_sub_u32 s{sT}, {134-KE0}, s{sT}')
    rescale(range(ERAW, ERAW+28), sT, t0, t1)
    e(f's_lshl_b32 s{sT}, s{sT}, 1')
    for i in range(32): e(f'v_ldexp_f32 v{BIAS+i}, v{BIAS+i}, s{sT}')
    e(f's_add_u32 s{s2KE}, s{s2KE}, s{sT}')
    e(f's_lshl_b32 s{sT}, s{sT}, 23')
    e(f's_sub_u32 s{sSMC}, s{sSMC}, s{sT}')
    e(f's_mov_b32 s{sHI}, 0x7fc00000'); e(f's_mov_b32 s{sLO}, 0')
    e('s_nop 7')
    e('s_branch L_econv')

def slot(q, g): return ER + 4*q + g
TILES = [('c', t, slot(2 + (t-1)//4, (t-1) % 4)) for t in range(1, 9)]
TILES += [('b', m, slot(m//4, m % 4)) for m in range(8)]
TILES += [('b', 8, slot(4, 0)), ('b', 9, slot(4, 2))]
TILES += [('g', t, slot(5, t)) for t in (0, 2, 1)]
NT = len(TILES)
INF = 10**9

class Op:
    def __init__(self, text, ready=-1, dead=INF, deps=()):
        self.text = text; self.ready = ready; self.dead = dead; self.deps = list(deps)
        self.ins = Ins(text) if text else None; self.at = None
class Q:
    def __init__(self, name): self.name = name; self.ops = []
    def add(self, text, ready=-1, dead=INF, deps=()):
        o = Op(text, ready, dead, deps); self.ops.append(o); return o
    def addl(self, texts, ready=-1, dead=INF, deps=()):
        for x in texts: o = self.add(x, ready, dead, deps)
        return o

def main_stream():
    mf = []; base = []; cend = {}
    K0 = int(opts.get('k0', 3))
    for T, (kind, par, er) in enumerate(TILES):
        base.append(len(mf))
        b = BF[T & 1]
        order = [(mt, s) for mt in range(8) for s in range(4)]
        if T == 0: order = [(mt, s) for s in range(4) for mt in range(K0)] + order[4*K0:]
        for mt, s in order:
            c = vr(BIAS+4*mt, 4) if s == 0 else vr(ACC+4*mt, 4)
            if s == 3: cend[T, mt] = len(mf)
            mf.append(f'v_mfma_f32_16x16x32_f16 {vr(ACC+4*mt,4)}, {ar((mt*4+s)*4,4)}, {vr(b+4*s,4)}, {c}')
    NM = len(mf)
    base.append(NM + 1000)
    S2R = int(opts.get('s2r', 8))
    qc = Q('s2conv')
    cv = []
    for q in range(4, 7): s2w = qc.addl(econv(q, LQ, S2 + 4*(q-4)), S2R)
    chk = qc.addl([f'v_max_f32 v{MX}, v{MX}, v{DEN}', f'v_cmp_le_f32 vcc, s{sHI}, v{MX}',
                   f'v_cmp_nlt_f32 s[{sCMP}:{sCMP+1}], v{MX}, s{sLO}', 's_cbranch_vccnz L_efix',
                   f's_cmp_eq_u64 s[{sCMP}:{sCMP+1}], 0\n    s_cbranch_scc1 L_efix'], S2R)
    s2r = qc.addl([f'ds_read_b128 {vr(S2+4*s,4)}, v{AS2} offset:{16*RS+64*s}' for s in range(4)])
    late = [unp(aRW, AGW, 1, sWB), unp(AGW, AGW, 0, sWB)]
    for k in range(6): late += [unp(AG+k, GA+k, 1, sWB), unp(GA+k, GA+k, 0, sWB)]
    la0 = qc.addl(late[:2]); la1 = qc.addl(late[2:])
    qu = Q('uchain')
    last = qu.addl([f'ds_read2_b32 {vr(U2,2)}, v{aUR} offset0:0 offset1:8'], 4)
    chain = [f'v_and_b32 v{PS}, s{sABS}, v{PV}',
             f'v_pk_max_u16 v{PM}, v{PS}, v{PS} op_sel:[0,1] op_sel_hi:[1,0]',
             f'v_max_f32 v{UM}, |v{U2}|, |v{U2+1}|']
    chain += reduce_([PM, UM])
    chain += [f'v_readlane_b32 s{sU}, v{PM}, 63', f'v_readlane_b32 s{sU+1}, v{UM}, 63',
              f's_bfe_u32 s{sU}, s{sU}, 0x80007', f's_max_u32 s{sU}, s{sU}, 60',
              f's_sub_u32 s{sKO}, s{sU}, 134', f's_sub_u32 s{sKO}, s{sKO}, s{s2KE}',
              f's_sub_u32 s{sU}, s{sU}, 22', f's_mul_i32 s{sCP}, s{sU}, 0x800080',
              f's_lshr_b32 s{sU+1}, s{sU+1}, 23', f's_max_u32 s{sU+1}, s{sU+1}, 60',
              f's_sub_u32 s{sU}, 134, s{sU+1}', f's_sub_u32 s{sU+1}, s{sU+1}, 7', f's_lshl_b32 s{sCU}, s{sU+1}, 23',
              f'v_and_b32 v{PM}, s{sSGN}, v{PV}',
              f'v_ldexp_f32 v{U2}, v{U2}, s{sU}', f'v_ldexp_f32 v{U2+1}, v{U2+1}, s{sU}',
              f'v_pk_sub_u16 v{PS}, v{PS}, s{sCP} clamp',
              f'v_cvt_pk_f16_f32 v{U2}, v{U2}, v{U2+1}',
              f'v_lshl_or_b32 v{PS}, v{PS}, 3, v{PM}',
              f'ds_write_b32 v{aRW}, v{U2} offset:{UROW*RS}',
              f'ds_write_b32 v{aRW}, v{PS} offset:{PROW*RS}']
    qu.addl(chain[:-2], deps=[(last, RDLAT)])
    udone = qu.addl(chain[-2:], deps=[(la0, 1)])
    qr = Q('gram'); qw = Q('gramw')
    gstages = []
    prev = [(udone, 0), (chk, 0), (la1, 0)]
    prevw = []
    for gs in range(4):
        row = UROW if gs % 2 == 0 else PROW
        other = OWN if gs < 2 else S2
        last = qr.addl([f'ds_read_b128 {vr(GB+4*s,4)}, v{AK} offset:{row*RS+64*s}' for s in (3, 2, 1, 0)], deps=prev)
        lm = qr.addl([f'v_pk_mul_f16 v{GB+i}, v{GB+i}, v{other+i}' for i in range(16)], deps=[(last, RDLAT), (s2r, RDLAT)])
        targets = [(OWN, LQ), (S2, LQ+4)] if gs < 2 else [(S2, LQ+8)]
        ms = []
        for bb, d in targets:
            for s in range(4):
                c = '0' if s == 0 else vr(d, 4)
                ms.append(f'v_mfma_f32_16x16x32_f16 {vr(d,4)}, {vr(GB+4*s,4)}, {vr(bb+4*s,4)}, {c}')
        mark = Op(None)
        gstages.append(([(lm, 1)] + prevw, ms, mark))
        tab = GTSZ * (gs % 2)
        if gs < 2:
            gw = qw.addl([f'ds_write_b128 v{AGW}, {vr(LQ,4)} offset:{tab}',
                          f'ds_write_b128 v{AGW}, {vr(LQ+4,4)} offset:{tab+16*CS}'], deps=[(mark, LAG)])
        else:
            gw = qw.add(f'ds_write_b128 v{AGW}, {vr(LQ+8,4)} offset:{tab+16*CS+64}', deps=[(mark, LAG)])
        prev = [(mark, 0)]; prevw = [(gw, 1)]
    gdone = mark
    gl = qw.addl([f'ds_read2st64_b32 {vr(LQ+2*q,2)}, v{GA+q} offset0:0 offset1:{GTSZ//256}' for q in (5, 4, 1, 0, 3, 2)], deps=[(gw, 1)])
    qf = Q('fma')
    done_tile = {}
    for T, (kind, par, er) in enumerate(TILES):
        for mt in range(8):
            rdy = cend[T, mt] + LAG
            dead = base[T+1] + 4*mt - 6
            two = T == NT - 1
            for r in range(4):
                acc = er if ((r & 1) == 0 or not two) else E2
                x = ACC + 4*mt + r; h = HH + 4*mt + r
                dp = [(udone, 0)] if (mt == 0 and r == 0 and U2 <= er < U2 + 8) else []
                if mt == 0 and r < (2 if two else 1): o = qf.add(f'v_mul_f32 v{acc}, |v{x}|, v{h}', rdy, dead + r, dp)
                else: o = qf.add(f'v_fma_f32 v{acc}, |v{x}|, v{h}, v{acc}', rdy, dead + r)
        done_tile[T] = qf.add(f'v_add_f32 v{er}, v{er}, v{E2}', rdy, dead + 5) if two else o
    qg = Q('gen')
    for i in range(4, 16):
        qg.add(f'v_pk_mul_f16 v{BF[0]+i}, v{BF[0]+i}, v{OWN+i}', -1, K0*(i//4) - 2 - (3 - i % 4)//2)
    for T in range(1, NT):
        kind, par, er = TILES[T]
        b = BF[T & 1]
        r0 = base[T-1]
        dl = base[T] - 3 - 16 - RDLAT
        if kind == 'c':
            qg.add(f'v_mov_b32_dpp v{AROT}, v{AOWN} row_ror:{16-par} {DPPM}', r0 - 8, dl - 4)
            for s in (3, 2, 1, 0): last = qg.add(f'ds_read_b128 {vr(b+4*s,4)}, v{AROT} offset:{64*s}', r0, dl - s)
            other = OWN
        elif kind == 'b':
            for s in (3, 2, 1, 0): last = qg.add(f'ds_read_b128 {vr(b+4*s,4)}, v{AK} offset:{(16+par)*RS+64*s}', r0, dl - s, [(s2w, 0)])
            other = OWN
        else:
            for s in (3, 2, 1, 0): qg.add(f'ds_read_b128 {vr(STG+4*s,4)}, v{AG+2*par} offset:{16*RS+64*s}', r0 - 6, dl - s - 4, [(gdone, 0)])
            for s in (3, 2, 1, 0): last = qg.add(f'ds_read_b128 {vr(b+4*s,4)}, v{AG+2*par+1} offset:{16*RS+64*s}', r0, dl - s)
            other = STG
        for i in range(16):
            qg.add(f'v_pk_mul_f16 v{b+i}, v{b+i}, v{other+i}', 0, base[T] + 1 - (15 - i), [(last, RDLAT)])
    qo = Q('red'); qp = Q('post')
    tile_of = {er: T for T, (_, _, er) in enumerate(TILES)}
    qp.add(f'v_mov_b32 v{NINF}, 0xff800000')
    GR = (2, 3, 0, 1, 4)
    for n, q in enumerate(GR):
        t = [slot(q, g) for g in range(4)]
        tl = max(tile_of[x] for x in t if x in tile_of)
        seq = [f'v_permlane32_swap_b32 v{t[0]}, v{t[2]}', f'v_permlane32_swap_b32 v{t[1]}, v{t[3]}',
               f'v_add_f32 v{t[0]}, v{t[0]}, v{t[2]}', f'v_add_f32 v{t[1]}, v{t[1]}, v{t[3]}',
               f'v_permlane16_swap_b32 v{t[0]}, v{t[1]}', f'v_add_f32 v{t[0]}, v{t[0]}, v{t[1]}']
        if q == 4:
            seq = [f'v_permlane32_swap_b32 v{t[0]}, v{t[2]}', f'v_add_f32 v{t[0]}, v{t[0]}, v{t[2]}', f'v_mov_b32 v{t[1]}, v{t[0]}'] + seq[4:]
        rd = qo.addl(seq, deps=[(done_tile[tl], 1)])
        seq = [f'v_fma_f32 v{t[0]}, v{LQ+2*q}, s{sCU}, v{t[0]}']
        if q == 4: seq.append(f'v_cndmask_b32 v{t[0]}, v{NINF}, v{t[0]}, s[{sM4}:{sM4+1}]')
        if q == 3: seq.append(f'v_cndmask_b32 v{t[0]}, v{NINF}, v{t[0]}, s[{sM3}:{sM3+1}]')
        if n == 2: seq.append(f'v_max3_f32 v{MX}, v{slot(GR[0],0)}, v{slot(GR[1],0)}, v{t[0]}')
        if n == 4: seq.append(f'v_max3_f32 v{MX}, v{MX}, v{slot(GR[3],0)}, v{t[0]}')
        qp.addl(seq, deps=[(rd, 1), (gl, RDLAT)])
    R = [slot(q, 0) for q in GR]
    QQ = [LQ + 2*q + 1 for q in GR]
    seq = reduce_([MX], 'v_max_f32') + [f'v_readlane_b32 s{sM1}, v{MX}, 63']
    seq += [f'v_subrev_f32 v{r}, s{sM1}, v{r}' for r in R]
    seq += [f'v_mul_f32 v{r}, s{sSMC}, v{r}' for r in R]
    seq += [f'v_exp_f32 v{r}, v{r}' for r in R]
    seq += [f'v_add_f32 v{DEN}, v{R[0]}, v{R[1]}', f'v_mul_f32 v{NUM}, v{R[0]}, v{QQ[0]}']
    for k in range(1, 5):
        if k > 1: seq.append(f'v_add_f32 v{DEN}, v{DEN}, v{R[k]}')
        seq.append(f'v_fmac_f32 v{NUM}, v{R[k]}, v{QQ[k]}')
    seq += [f's_lshl_b32 s{sT}, s{sB}, 1', f'v_mov_b32 v{vW}, s{sT}', f'v_mov_b32 v{slot(0,0)}, s{sM1}']
    qp.addl(seq)
    t = [slot(5, g) for g in range(4)]
    qo.addl([f'v_permlane32_swap_b32 v{t[0]}, v{t[2]}', f'v_add_f32 v{t[0]}, v{t[0]}, v{t[2]}'], deps=[(done_tile[NT-2], 1)])
    bg = [qg, qw, qc, qu, qr, qp, qo]
    qs = [qf] + bg
    hist = [Ins(x) for x in A.raw[-16:]]
    stats = dict(over=0, forced=0, free=0)
    now = [-1]
    def put(ins):
        hist.append(ins); e(ins.text)
    def hazard(ins):
        dist = 0
        for p in reversed(hist[-16:]):
            if need_states(p, ins) > dist: return True
            dist += p.states
        return False
    def deps_ok(deps): return all(d.at is not None and d.at + lat <= now[0] for d, lat in deps)
    def ok_ready(o, k): return o.ready <= k and deps_ok(o.deps)
    def cost_of(o): return 0 if o.ins.kind == 'salu' else (2 if o.ins.trans else 1)
    def can(o, nxt, nv):
        ins = o.ins
        if hazard(ins): return False
        if ins.kind in ('ldsrd', 'ldswr') and nv > 0: return False
        if ins.kind == 'valu' and hist[-1].kind == 'valu' and (hist[-1].d & ins.u): return False
        if nxt is not None and ins.kind == 'valu' and (ins.d & nxt.u): return False
        return True
    def emit_gap(k, cap, nxt):
        used = 0; nv = 0; ns = 0
        fma_ready = lambda: qf.ops and ok_ready(qf.ops[0], k)
        reserve = 1 if (fma_ready() and cap > 0) else 0
        while True:
            pick = None
            for q in qs:
                if q.ops and q.ops[0].dead <= k:
                    assert all(d.at is not None for d, _ in q.ops[0].deps), ('unmet dep', q.ops[0].text, k)
                    pick = q; stats['forced'] += 1; break
            if pick is None:
                for q in bg:
                    if not (q.ops and ok_ready(q.ops[0], k)): continue
                    o = q.ops[0]
                    if o.ins.kind == 'salu':
                        if ns >= 1 or hazard(o.ins): continue
                        pick = q; break
                    rs = reserve
                    if o.ins.trans and fma_ready() and qf.ops[0].dead > k + 8: rs = 0
                    if used + cost_of(o) + rs > cap: continue
                    if can(o, nxt, nv): pick = q; break
            if pick is None and fma_ready() and used + 1 <= cap and can(qf.ops[0], nxt, nv):
                pick = qf
            if pick is None and reserve:
                reserve = 0; continue
            if pick is None: break
            if pick is qf: reserve = 0
            o = pick.ops.pop(0); o.at = now[0]; put(o.ins); used += cost_of(o)
            if o.ins.kind == 'valu': nv += 1
            if o.ins.kind == 'salu': ns += 1
        if used > cap: stats['over'] += used - cap
        if used < cap: stats['free'] += cap - used
    mi = [Ins(x) for x in mf]
    emit_gap(-1, 0, mi[0])
    log = []
    for k in range(NM):
        put(mi[k]); now[0] += 1
        nxt = mi[k+1] if k + 1 < NM else None
        ins_gram = gstages and k % 4 == 3 and k > 16 and deps_ok(gstages[0][0])
        if ins_gram:
            _, ms, mark = gstages.pop(0)
            gi = [Ins(x) for x in ms]
            emit_gap(k, 2, gi[0])
            for j, g in enumerate(gi):
                put(g); now[0] += 1
                if j + 1 == len(gi): mark.at = now[0]
                emit_gap(k, 2, gi[j+1] if j + 1 < len(gi) else nxt)
            log.append(k)
        else:
            emit_gap(k, 2, nxt)
    stamp()
    assert not gstages
    left = {q.name: len(q.ops) for q in qs if q.ops}
    now[0] += 1000
    for q in bg + [qf]:
        pass
    while any(q.ops for q in qs):
        prog = False
        for q in bg + [qf]:
            if q.ops and deps_ok(q.ops[0].deps) and (not hazard(q.ops[0].ins)):
                o = q.ops.pop(0); o.at = now[0] - 100; put(o.ins); prog = True; break
        if not prog:
            q = next(q for q in [qf] + bg if q.ops and deps_ok(q.ops[0].deps))
            o = q.ops.pop(0); o.at = now[0] - 100; put(Ins('s_nop 7')); A.raw.pop(); put(o.ins)
    print('mfma', NM, stats, 'gram after', log, 'chk at', chk.at, 'udone', udone.at, 'gather', gl.at, 'left', left)

def tail():
    a, b, t = slot(5, 0), slot(5, 1), slot(5, 3)
    f = slot(0, 0)
    e(f'v_permlane32_swap_b32 v{b}, v{t}')
    e(f'v_add_f32 v{b}, v{b}, v{t}')
    e(f'v_permlane16_swap_b32 v{a}, v{b}')
    e(f'v_fma_f32 v{a}, v{LQ+10}, s{sCU}, v{a}')
    e(f'v_add_f32 v{a}, v{a}, v{b}')
    e(f'v_cndmask_b32 v{a}, v{NINF}, v{a}, s[{sM5}:{sM5+1}]')
    e(f'v_max_f32 v{MX}, s{sM1}, v{a}')
    e(reduce_([MX], 'v_max_f32'))
    e(f'v_readlane_b32 s{sMX}, v{MX}, 63')
    e(f'v_subrev_f32 v{a}, s{sMX}, v{a}')
    e(f'v_subrev_f32 v{f}, s{sMX}, v{f}')
    e(f'v_mul_f32 v{a}, s{sSMC}, v{a}')
    e(f'v_mul_f32 v{f}, s{sSMC}, v{f}')
    e(f'v_exp_f32 v{a}, v{a}')
    e(f'v_exp_f32 v{f}, v{f}')
    e(f'v_mul_f32 v{t}, v{a}, v{LQ+11}')
    e(f'v_fma_f32 v{DEN}, v{DEN}, v{f}, v{a}')
    e(f'v_fma_f32 v{NUM}, v{NUM}, v{f}, v{t}')
    e(reduce_([DEN, NUM], 'v_add_f32'))
    e(f'v_rcp_f32 v{DEN}, v{DEN}')
    e(f'v_ldexp_f32 v{NUM}, v{NUM}, s{sKO}')
    e(f's_mov_b32 exec_lo, 0')
    e(f's_mov_b32 exec_hi, 0x80000000')
    e(f'v_mul_f32 v{NUM}, v{NUM}, v{DEN}')
    e(f'v_cvt_pk_bf16_f32 v{NUM}, v{NUM}, v{NUM}')
    e(f'global_store_short v{vW}, v{NUM}, s[32:33]')
    if TIMING:
        stamp()
        e('s_waitcnt vmcnt(0)')
        stamp()
        e('s_memrealtime s[100:101]')
        e('s_load_dwordx2 s[90:91], s[0:1], 80')
        e('s_waitcnt lgkmcnt(0)')
        e(f's_lshl_b32 s{sT}, s{sB}, 6')
        e(f'v_mov_b32 v2, s{sT}')
        e('v_mov_b32 v3, s98'); e('global_store_dword v2, v3, s[90:91]')
        e('v_mov_b32 v3, s100'); e('global_store_dword v2, v3, s[90:91] offset:4')
        for i in range(stampn[0]):
            e(f'v_mov_b32 v3, s{60+2*i}'); e(f'global_store_dword v2, v3, s[90:91] offset:{8+4*i}')
    e('L_end:')
    e('s_endpgm')

prologue()
main_stream()
tail()
fixups()
body = A.finalize(verbose=True)
if int(opts.get('v', 0)):
    for x in A.nops: print('nop', x)
    for x in A.waits: print('wait', x)

asm = HDR + f'''; @launch grid=(256,1,1) block=(256,1,1) lds={LDS_TOTAL}
.amdgcn_target "amdgcn-amd-amdhsa--gfx950"
.text
.globl standalone__factorization_afm__recsys_kernel
.p2align 8
.type standalone__factorization_afm__recsys_kernel,@function
standalone__factorization_afm__recsys_kernel:
''' + body + '''
s_endpgm
.p2align 7
.type L_tab,@object
L_tab:
''' + '\n'.join('.long ' + ', '.join(f'{x:#x}' for x in row) for t in lane_table() for row in t) + '''
L_ctab:
.long ''' + ', '.join(f'{x:#x}' for x in CONSTS) + '''
.size L_tab, .-L_tab
.section .rodata,"a"
.p2align 6
.amdhsa_kernel standalone__factorization_afm__recsys_kernel
  .amdhsa_next_free_vgpr 384
  .amdhsa_next_free_sgpr 102
  .amdhsa_accum_offset 256
  .amdhsa_group_segment_fixed_size 0
  .amdhsa_kernarg_size 88
  .amdhsa_user_sgpr_count 2
  .amdhsa_user_sgpr_kernarg_segment_ptr 1
  .amdhsa_system_sgpr_workgroup_id_x 1
.end_amdhsa_kernel
'''
open(OUT, 'w').write(asm)
```
